```python
import torch

def _softmax(x, axis=-1):
    return torch.softmax(x, dim=axis)
def _gelu(x):
    return torch.nn.functional.gelu(x, approximate="tanh")
def _silu(x):
    return torch.nn.functional.silu(x)
def _sigmoid(x):
    return torch.sigmoid(x)
def _layernorm(x, axis=-1, eps=1e-5):
    m = x.mean(dim=axis, keepdim=True)
    v = x.var(dim=axis, keepdim=True, unbiased=False)
    return (x - m) / torch.sqrt(v + eps)
def _scatter_add(tgt, idx, src, axis=0):
    return tgt.clone().index_add_(axis, idx, src)
def _segment_sum(src, seg, n):
    out = torch.zeros((n,) + src.shape[1:], dtype=src.dtype)
    return out.index_add_(0, seg, src)
def _pad(x, pw):
    flat = tuple(v for pair in reversed(pw) for v in pair)
    return torch.nn.functional.pad(x, flat)

kernel_name = 'gated_mix__ssm_conv_s5__mixer_token_mlp__prompt'

def setup_inputs():

    _w = (lambda a: (lambda t: t.to(torch.bfloat16) if t.is_floating_point() else t)(torch.as_tensor(a)))
    def _A_setup():
        B, S, D = 1, 2048, 512
        P = D
        Lambda_re = -0.5 * (lambda _x: torch.exp(torch.as_tensor(_x)))((lambda *s: torch.randn(*s, dtype=torch.bfloat16) * 0.2)(P))
        Lambda_im = (lambda *s: torch.randn(*s, dtype=torch.bfloat16) * 0.4)(P) * 1.0
        B_re = (lambda *s: torch.randn(*s, dtype=torch.bfloat16) * 0.2)(P, D) * (D ** -0.5)
        B_im = (lambda *s: torch.randn(*s, dtype=torch.bfloat16) * 0.2)(P, D) * (D ** -0.5)
        C_re = (lambda *s: torch.randn(*s, dtype=torch.bfloat16) * 0.2)(D, P) * (P ** -0.5)
        C_im = (lambda *s: torch.randn(*s, dtype=torch.bfloat16) * 0.2)(D, P) * (P ** -0.5)
        log_dt = (lambda *s: torch.randn(*s, dtype=torch.bfloat16) * 0.2)(P) * 0.3 - 2.0
        Dskip = (lambda *s: torch.randn(*s, dtype=torch.bfloat16) * 0.05)(D)
        return {
            "x": _w((lambda *s: torch.randn(*s, dtype=torch.bfloat16) * 0.05)(B, S, D)),
            "Lambda_re": _w(Lambda_re),
            "Lambda_im": _w(Lambda_im),
            "B_re": _w(B_re),
            "B_im": _w(B_im),
            "C_re": _w(C_re),
            "C_im": _w(C_im),
            "log_dt": _w(log_dt),
            "Dskip": _w(Dskip),
        }
    _A_in = _A_setup()

    def _B_setup():
        B, S, D, F = 1, 2048, 512, 1376
        return {
            "x": _w((lambda *s: torch.randn(*s, dtype=torch.bfloat16) * 0.05)(B, S, D)),
            "w1": _w((lambda *s: torch.randn(*s, dtype=torch.bfloat16) * 0.2)(S, F) * (S ** -0.5)),
            "b1": _w((lambda *s: torch.randn(*s, dtype=torch.bfloat16) * 3.2)(F) * 0.02),
            "w2": _w((lambda *s: torch.randn(*s, dtype=torch.bfloat16) * 0.05)(F, S) * (F ** -0.5)),
            "b2": _w((lambda *s: torch.randn(*s, dtype=torch.bfloat16) * 0.1)(S) * 0.02),
        }
    _B_in = _B_setup()

    return {
        "A_x": _A_in["x"],
        "A_Lambda_re": _A_in["Lambda_re"],
        "A_Lambda_im": _A_in["Lambda_im"],
        "A_B_re": _A_in["B_re"],
        "A_B_im": _A_in["B_im"],
        "A_C_re": _A_in["C_re"],
        "A_C_im": _A_in["C_im"],
        "A_log_dt": _A_in["log_dt"],
        "A_Dskip": _A_in["Dskip"],
        "B_x": _B_in["x"],
        "B_w1": _B_in["w1"],
        "B_b1": _B_in["b1"],
        "B_w2": _B_in["w2"],
        "B_b2": _B_in["b2"],
        "gate_w": _w((lambda *s: torch.randn(*s, dtype=torch.bfloat16) * 0.05)(512) * 16.0),
    }

def reference(A_x, A_Lambda_re, A_Lambda_im, A_B_re, A_B_im, A_C_re, A_C_im, A_log_dt, A_Dskip, B_x, B_w1, B_b1, B_w2, B_b2, gate_w):
    def _A_ref(x, Lambda_re, Lambda_im, B_re, B_im, C_re, C_im, log_dt, Dskip):
        Bsz, L, H = x.shape
        Lam = Lambda_re + 1j * Lambda_im
        Bmat = B_re + 1j * B_im
        Cmat = C_re + 1j * C_im
        dt = torch.exp(log_dt)
        Lam_bar = torch.exp(dt * Lam)
        B_bar = ((Lam_bar - 1.0) / Lam)[:, None] * Bmat
        Bu = torch.einsum("bld,pd->blp", x + 0j, B_bar)
        h = torch.zeros_like(Bu[:, 0, :])
        hs = []
        for t in range(L):
            h = Lam_bar[None, :] * h + Bu[:, t, :]
            hs.append(h)
        hseq = torch.stack(hs, 1)
        y = 2.0 * torch.einsum("blp,dp->bld", hseq, Cmat).real + x * Dskip[None, None, :]
        return y

    def _B_ref(x, w1, b1, w2, b2):
        B, S, D = x.shape
        h = _layernorm(x, axis=-1)
        u = torch.einsum("bsd,sf->bdf", h, w1) + b1
        u = _gelu(u)
        y = torch.einsum("bdf,fs->bds", u, w2) + b2
        return (lambda x, *d: x.permute(*d))(y, 0, 2, 1)

    x = A_x
    g = _sigmoid((x * gate_w).sum(-1, keepdims=True))
    a = _A_ref(x, A_Lambda_re, A_Lambda_im, A_B_re, A_B_im, A_C_re, A_C_im, A_log_dt, A_Dskip)
    b = _B_ref(x, B_w1, B_b1, B_w2, B_b2)
    return g * a + (1 - g) * b
```

```python
import sys

NAME = "gated_mix__ssm_conv_s5__mixer_token_mlp__prompt"

KA = dict(x=0, lre=8, lim=16, bre=24, bim=32, cre=40, cim=48, ldt=56, dsk=64,
          w1=80, b1=88, w2=96, b2=104, gw=112, out=120, dbg=128, ws=136)

WS = dict(
    hln=(0x0000000, 2048 * 512 * 2),
    g=(0x0200000, 2048 * 4),
    cp=(0x0300000, 512 * 1024 * 2),
    xx=(0x0400000, 512 * 16384),
    e=(0x0C00000, 64 * 512 * 8),
    u=(0x0D00000, 512 * 1408 * 2),
    h=(0x1000000, 2048 * 1024 * 2),
)
URS = 1408 * 2


class Asm:
    def __init__(self):
        self.lines = []
        self.uid = 0

    def __call__(self, s):
        self.lines.append("    " + s)

    def label(self, l):
        self.lines.append(l + ":")

    def newlabel(self, p):
        self.uid += 1
        return f"L_{p}_{self.uid}"

    def raw(self, s):
        self.lines.append(s)


def srd_input(a, sreg, key, nbytes):
    a(f"s_load_dwordx2 s[{sreg}:{sreg+1}], s[0:1], {KA[key]}")


def srd_finish(a, sreg, nbytes):
    a(f"s_and_b32 s{sreg+1}, s{sreg+1}, 0xffff")
    a(f"s_mov_b32 s{sreg+2}, {nbytes}")
    a(f"s_mov_b32 s{sreg+3}, 0x00020000")


def srd_ws(a, sreg, wsreg, key):
    off, size = WS[key]
    a(f"s_add_u32 s{sreg}, s{wsreg}, {off}")
    a(f"s_addc_u32 s{sreg+1}, s{wsreg+1}, 0")
    a(f"s_and_b32 s{sreg+1}, s{sreg+1}, 0xffff")
    a(f"s_mov_b32 s{sreg+2}, {size}")
    a(f"s_mov_b32 s{sreg+3}, 0x00020000")


class Op:
    def __init__(self, kind, srds, rs, scur, vdma, vfrag, perm=False):
        self.kind = kind
        self.srds = srds
        self.rs = rs
        self.scur = scur
        self.vdma = vdma
        self.vfrag = vfrag
        self.perm = perm
        self.rowoff = [i * 8 * rs for i in range(8)]


def setup_op(a, op, s_wb, opidx):
    rs = op.rs
    a(f"v_lshrrev_b32 v14, 3, v1")
    a(f"v_mul_u32_u24 v14, {rs}, v14")
    a(f"v_and_b32 v15, 7, v1")
    if op.kind == 'KC':
        a(f"v_lshrrev_b32 v16, 4, v1")
        a(f"v_xor_b32 v15, v15, v16")
        a(f"v_lshlrev_b32 v15, 4, v15")
        a(f"v_add_u32 v{op.vdma}, v14, v15")
        a(f"v_xor_b32 v15, 64, v15")
        a(f"v_add_u32 v{op.vdma+1}, v14, v15")
        a(f"v_and_b32 v14, 31, v1")
        if op.perm:
            a(f"v_lshrrev_b32 v15, 2, v14")
            a(f"v_and_b32 v15, 1, v15")
            a(f"v_lshlrev_b32 v15, 5, v15")
            a(f"v_lshrrev_b32 v16, 3, v14")
            a(f"v_lshl_add_u32 v15, v16, 2, v15")
            a(f"v_and_b32 v14, 3, v14")
            a(f"v_add_u32 v14, v14, v15")
        a(f"v_lshrrev_b32 v15, 1, v14")
        a(f"v_and_b32 v15, 7, v15")
        a(f"v_lshrrev_b32 v16, 5, v1")
        a(f"v_xor_b32 v15, v15, v16")
        a(f"v_lshlrev_b32 v15, 4, v15")
        a(f"v_lshl_add_u32 v14, v14, 7, v15")
        a(f"v_add_u32 v{op.vfrag}, s{s_wb}, v14")
        for j in range(1, 4):
            a(f"v_xor_b32 v{op.vfrag+j}, {j<<5}, v{op.vfrag}")
    else:
        a(f"v_lshrrev_b32 v16, 2, v1")
        a(f"v_and_b32 v16, 4, v16")
        a(f"v_xor_b32 v15, v15, v16")
        a(f"v_lshl_add_u32 v{op.vdma}, v15, 4, v14")
        a(f"v_lshrrev_b32 v14, 5, v1")
        a(f"v_lshlrev_b32 v14, 3, v14")
        a(f"v_lshrrev_b32 v15, 2, v1")
        a(f"v_and_b32 v15, 3, v15")
        a(f"v_add_u32 v14, v14, v15")
        a(f"v_lshlrev_b32 v14, 7, v14")
        a(f"v_lshrrev_b32 v16, 4, v1")
        a(f"v_and_b32 v16, 1, v16")
        a(f"v_lshlrev_b32 v16, 1, v16")
        a(f"v_lshrrev_b32 v17, 1, v1")
        a(f"v_and_b32 v17, 1, v17")
        a(f"v_add_u32 v16, v16, v17")
        a(f"v_lshrrev_b32 v15, 1, v15")
        a(f"v_lshlrev_b32 v15, 2, v15")
        a(f"v_xor_b32 v16, v16, v15")
        a(f"v_lshl_add_u32 v14, v16, 4, v14")
        a(f"v_and_b32 v17, 1, v1")
        a(f"v_lshl_add_u32 v14, v17, 3, v14")
        a(f"v_add_u32 v{op.vfrag}, s{s_wb}, v14")
        a(f"v_xor_b32 v{op.vfrag+1}, 64, v{op.vfrag}")


def dma_stage(a, ops, slot, s_wb, s_t):
    out = []
    for oi, op in enumerate(ops):
        for i in range(8):
            lds = slot * 16384 + oi * 8192 + i * 1024
            v = op.vdma + ((i & 1) if op.kind == 'KC' else 0)
            out.append([f"s_add_u32 m0, s{s_wb}, {lds}",
                        f"s_add_u32 s{s_t}, s{op.scur}, {op.rowoff[i]}",
                        f"buffer_load_dwordx4 v{v}, s[{op.srds[i]}:{op.srds[i]+3}], s{s_t} offen lds"])
        adv = 128 if op.kind == 'KC' else 64 * op.rs
        out[-1].append(f"s_add_u32 s{op.scur}, s{op.scur}, {adv}")
    return out


def frag_reads(a, ops, slot, j, fset):
    n = 0
    for oi, op in enumerate(ops):
        for q in range(2):
            dst = 32 + fset * 16 + oi * 8 + q * 4
            base = slot * 16384 + oi * 8192
            if op.kind == 'KC':
                off = base + q * (2048 if op.perm else 4096)
                a(f"ds_read_b128 v[{dst}:{dst+3}], v{op.vfrag+j} offset:{off}")
                n += 1
            else:
                off = base + j * 2048
                a(f"ds_read_b64_tr_b16 v[{dst}:{dst+1}], v{op.vfrag+q} offset:{off}")
                a(f"ds_read_b64_tr_b16 v[{dst+2}:{dst+3}], v{op.vfrag+q} offset:{off+512}")
                n += 2
    return n


def mfmas(fset):
    r = []
    for qm in range(2):
        for qn in range(2):
            acc = 64 + (qm * 2 + qn) * 16
            A = 32 + fset * 16 + qm * 4
            B = 32 + fset * 16 + 8 + qn * 4
            r.append(f"v_mfma_f32_32x32x16_bf16 v[{acc}:{acc+15}], v[{A}:{A+3}], v[{B}:{B+3}], v[{acc}:{acc+15}]")
    return r


def gemm_loop(a, ops, n, s_wb, s_t):
    for r in range(64, 128):
        a(f"v_mov_b32 v{r}, 0")
    for st in range(min(2, n)):
        for grp in dma_stage(a, ops, st & 1, s_wb, s_t):
            for l in grp:
                a(l)
    for st in range(n):
        slot = st & 1
        a(f"s_waitcnt vmcnt({16 if st + 1 < n else 0})")
        frag_reads(a, ops, slot, 0, 0)
        for j in range(4):
            if j < 3:
                nn = frag_reads(a, ops, slot, j + 1, (j + 1) & 1)
                a(f"s_waitcnt lgkmcnt({nn})")
                for m in mfmas(j & 1):
                    a(m)
            else:
                a("s_waitcnt lgkmcnt(0)")
                grps = dma_stage(a, ops, slot, s_wb, s_t) if st + 2 < n else []
                ms = mfmas(j & 1)
                for k, m in enumerate(ms):
                    a(m)
                    for grp in grps[k * 4:(k + 1) * 4]:
                        for l in grp:
                            a(l)


def bf16r(a, dst, src):
    a(f"v_cvt_pk_bf16_f32 v{dst}, v{src}, v{src}")
    a(f"v_lshlrev_b32 v{dst}, 16, v{dst}")


def lam_consts(a, vp, s_lre, s_lim, s_ldt, base, need_coef):
    lr, li, cr, ci = base, base + 1, base + 2, base + 3
    t = base + 4
    a(f"v_lshlrev_b32 v{t}, 1, v{vp}")
    a(f"buffer_load_ushort v{t+1}, v{t}, s[{s_lre}:{s_lre+3}], 0 offen")
    a(f"buffer_load_ushort v{t+2}, v{t}, s[{s_lim}:{s_lim+3}], 0 offen")
    a(f"buffer_load_ushort v{t+3}, v{t}, s[{s_ldt}:{s_ldt+3}], 0 offen")
    a("s_waitcnt vmcnt(0)")
    a(f"v_lshlrev_b32 v{t+1}, 16, v{t+1}")
    a(f"v_lshlrev_b32 v{t+2}, 16, v{t+2}")
    a(f"v_lshlrev_b32 v{t+3}, 16, v{t+3}")
    a(f"v_mul_f32 v{t+3}, 0x3fb8aa3b, v{t+3}")
    a(f"v_exp_f32 v{t+3}, v{t+3}")
    a("s_nop 0")
    bf16r(a, t + 3, t + 3)
    a(f"v_mul_f32 v{t+4}, v{t+3}, v{t+1}")
    a(f"v_mul_f32 v{t+5}, v{t+3}, v{t+2}")
    a(f"v_mul_f32 v{t+4}, 0x3fb8aa3b, v{t+4}")
    a(f"v_exp_f32 v{t+4}, v{t+4}")
    a(f"v_mul_f32 v{t+5}, 0.15915494, v{t+5}")
    a(f"v_fract_f32 v{t+5}, v{t+5}")
    a(f"v_cos_f32 v{t+6}, v{t+5}")
    a(f"v_sin_f32 v{t+7}, v{t+5}")
    a("s_nop 0")
    a(f"v_mul_f32 v{lr}, v{t+4}, v{t+6}")
    a(f"v_mul_f32 v{li}, v{t+4}, v{t+7}")
    if need_coef:
        a(f"v_add_f32 v{t+4}, -1.0, v{lr}")
        a(f"v_mul_f32 v{t+5}, v{t+1}, v{t+1}")
        a(f"v_fma_f32 v{t+5}, v{t+2}, v{t+2}, v{t+5}")
        a(f"v_rcp_f32 v{t+5}, v{t+5}")
        a(f"v_mul_f32 v{t+6}, v{t+4}, v{t+1}")
        a(f"v_fma_f32 v{t+6}, v{li}, v{t+2}, v{t+6}")
        a(f"v_mul_f32 v{t+7}, v{li}, v{t+1}")
        a(f"v_fma_f32 v{t+7}, -v{t+4}, v{t+2}, v{t+7}")
        a(f"v_mul_f32 v{cr}, v{t+6}, v{t+5}")
        a(f"v_mul_f32 v{ci}, v{t+7}, v{t+5}")


def kernel_header(a, name):
    a.raw(f".globl {name}")
    a.raw(".p2align 8")
    a.raw(f".type {name},@function")
    a.label(name)


def kd(name, vgpr, sgpr=102):
    acc = (vgpr + 3) // 4 * 4
    return f""".p2align 6
.amdhsa_kernel {name}
  .amdhsa_next_free_vgpr {vgpr}
  .amdhsa_next_free_sgpr {sgpr}
  .amdhsa_accum_offset {acc}
  .amdhsa_group_segment_fixed_size 0
  .amdhsa_kernarg_size 144
  .amdhsa_user_sgpr_count 2
  .amdhsa_user_sgpr_kernarg_segment_ptr 1
  .amdhsa_system_sgpr_workgroup_id_x 1
.end_amdhsa_kernel
"""


def k1(a):
    kernel_header(a, "k1_kernel")
    a("s_cmp_ge_u32 s2, 512")
    a("s_cbranch_scc1 L_k1_end")
    a("v_and_b32 v1, 63, v0")
    a("v_lshrrev_b32 v2, 6, v0")
    a("s_load_dwordx2 s[4:5], s[0:1], 136")
    a("s_nop 0")
    a("v_readfirstlane_b32 s3, v2")
    a("s_cmp_ge_u32 s2, 256")
    a("s_cbranch_scc1 L_k1_ln")
    srd_input(a, 8, 'x', 0)
    srd_input(a, 12, 'bre', 0)
    srd_input(a, 16, 'bim', 0)
    srd_input(a, 20, 'lre', 0)
    srd_input(a, 24, 'lim', 0)
    srd_input(a, 28, 'ldt', 0)
    a("s_waitcnt lgkmcnt(0)")
    srd_finish(a, 8, 2048 * 512 * 2)
    srd_finish(a, 12, 512 * 512 * 2)
    srd_finish(a, 16, 512 * 512 * 2)
    srd_finish(a, 20, 1024)
    srd_finish(a, 24, 1024)
    srd_finish(a, 28, 1024)
    srd_ws(a, 32, 4, 'xx')
    srd_ws(a, 36, 4, 'e')
    a("s_and_b32 s40, s2, 7")
    a("s_lshl_b32 s40, s40, 2")
    a("s_lshr_b32 s41, s2, 6")
    a("s_add_u32 s40, s40, s41")
    a("s_lshr_b32 s41, s2, 3")
    a("s_and_b32 s41, s41, 7")
    a("s_lshl_b32 s41, s41, 1")
    a("s_add_u32 s41, s41, s3")
    a("s_lshl_b32 s42, s3, 15")
    a("s_lshl_b32 s43, s40, 16")
    a("s_lshl_b32 s44, s41, 15")
    opA = Op('KC', [8] * 8, 1024, 43, 2, 6, perm=True)
    opB = Op('KC', [12] * 4 + [16] * 4, 1024, 44, 4, 10)
    opB.rowoff = [(i & 3) * 8 * 1024 for i in range(8)]
    setup_op(a, opA, 42, 0)
    setup_op(a, opB, 42, 1)
    gemm_loop(a, [opA, opB], 8, 42, 45)
    a("v_and_b32 v14, 31, v1")
    a("s_lshl_b32 s46, s41, 5")
    a("v_add_u32 v14, s46, v14")
    lam_consts(a, 14, 20, 24, 28, 20, False)
    a("s_lshl_b32 s46, s40, 4")
    a("s_add_u32 s46, s46, s41")
    a("s_lshl_b32 s46, s46, 14")
    a("v_lshlrev_b32 v15, 4, v1")
    a("s_nop 7")
    for qd in range(16):
        a(f"s_add_u32 s47, s46, {qd*1024}")
        a(f"buffer_store_dwordx4 v[{64+qd*4}:{64+qd*4+3}], v15, s[32:35], s47 offen")
    a("v_mov_b32 v16, 0")
    a("v_mov_b32 v17, 0")
    for t in range(32):
        qm, i = t >> 4, t & 15
        xr = 64 + (qm * 2 + 0) * 16 + i
        xi = 64 + (qm * 2 + 1) * 16 + i
        a(f"v_fma_f32 v18, -v21, v17, v{xr}")
        a(f"v_fma_f32 v19, v21, v16, v{xi}")
        a(f"v_fma_f32 v16, v20, v16, v18")
        a(f"v_fma_f32 v17, v20, v17, v19")
    a("v_lshrrev_b32 v18, 5, v1")
    a("s_lshl_b32 s46, s40, 1")
    a("v_add_u32 v18, s46, v18")
    a("v_lshl_add_u32 v18, v18, 9, v14")
    a("v_lshlrev_b32 v18, 3, v18")
    a("buffer_store_dwordx2 v[16:17], v18, s[36:39], 0 offen")
    a("s_endpgm")

    a.label("L_k1_ln")
    srd_input(a, 8, 'x', 0)
    srd_input(a, 12, 'gw', 0)
    srd_input(a, 16, 'cre', 0)
    srd_input(a, 20, 'cim', 0)
    a("s_waitcnt lgkmcnt(0)")
    srd_finish(a, 8, 2048 * 512 * 2)
    srd_finish(a, 12, 1024)
    srd_finish(a, 16, 512 * 512 * 2)
    srd_finish(a, 20, 512 * 512 * 2)
    srd_ws(a, 24, 4, 'hln')
    srd_ws(a, 28, 4, 'g')
    srd_ws(a, 32, 4, 'cp')
    a("s_sub_u32 s40, s2, 256")
    a("s_lshl_b32 s40, s40, 1")
    a("s_add_u32 s40, s40, s3")
    a("v_lshlrev_b32 v2, 4, v1")
    a("s_lshl_b32 s41, s40, 12")
    for r in range(4):
        a(f"s_add_u32 s42, s41, {r*1024}")
        a(f"buffer_load_dwordx4 v[{4+r*4}:{7+r*4}], v2, s[8:11], s42 offen")
    a("buffer_load_dwordx4 v[20:23], v2, s[12:15], 0 offen")
    a("s_lshl_b32 s43, s40, 10")
    a("buffer_load_dwordx4 v[24:27], v2, s[16:19], s43 offen")
    a("buffer_load_dwordx4 v[28:31], v2, s[20:23], s43 offen")
    a("s_mov_b32 s44, 0x05040100")
    a("s_mov_b32 s45, 0x07060302")
    a("s_waitcnt vmcnt(0)")
    for k in range(4):
        a(f"v_xor_b32 v{28+k}, 0x80008000, v{28+k}")
    for k in range(4):
        a(f"v_perm_b32 v{32+2*k}, v{28+k}, v{24+k}, s44")
        a(f"v_perm_b32 v{33+2*k}, v{28+k}, v{24+k}, s45")
    a("v_lshlrev_b32 v3, 5, v1")
    a("s_lshl_b32 s43, s40, 11")
    a("buffer_store_dwordx4 v[32:35], v3, s[32:35], s43 offen")
    a("buffer_store_dwordx4 v[36:39], v3, s[32:35], s43 offen offset:16")
    for k in range(4):
        a(f"v_lshlrev_b32 v{40+2*k}, 16, v{20+k}")
        a(f"v_and_b32 v{41+2*k}, 0xffff0000, v{20+k}")
    for r in range(4):
        for k in range(4):
            a(f"v_lshlrev_b32 v{48+8*r+2*k}, 16, v{4+4*r+k}")
            a(f"v_and_b32 v{49+8*r+2*k}, 0xffff0000, v{4+4*r+k}")
    for r in range(4):
        X = 48 + 8 * r
        a(f"v_add_f32 v{80+r}, v{X}, v{X+1}")
        for k in range(2, 8):
            a(f"v_add_f32 v{80+r}, v{80+r}, v{X+k}")
        for k in range(4):
            a(f"v_mul_f32 v88, v{X+2*k}, v{40+2*k}")
            a(f"v_mul_f32 v89, v{X+2*k+1}, v{41+2*k}")
            a(f"v_cvt_pk_bf16_f32 v88, v88, v89")
            a(f"v_lshlrev_b32 v89, 16, v88")
            a(f"v_and_b32 v88, 0xffff0000, v88")
            if k == 0:
                a(f"v_add_f32 v{84+r}, v88, v89")
            else:
                a(f"v_add_f32 v{84+r}, v{84+r}, v88")
                a(f"v_add_f32 v{84+r}, v{84+r}, v89")

    def wave_sum(regs):
        for sh in (8, 4, 2, 1):
            a("s_nop 1")
            for v in regs:
                a(f"v_add_f32_dpp v{v}, v{v}, v{v} row_ror:{sh} row_mask:0xf bank_mask:0xf")
        a("s_nop 1")
        for v in regs:
            for q in range(4):
                a(f"v_readlane_b32 s{48+q}, v{v}, {16*q}")
            a("s_nop 1")
            a(f"v_mov_b32 v{v}, s48")
            for q in range(1, 4):
                a(f"v_add_f32 v{v}, s{48+q}, v{v}")

    wave_sum(list(range(80, 88)))
    for r in range(4):
        X = 48 + 8 * r
        a(f"v_mul_f32 v{80+r}, 0x3b000000, v{80+r}")
        for k in range(8):
            a(f"v_sub_f32 v88, v{X+k}, v{80+r}")
            if k == 0:
                a(f"v_mul_f32 v{92+r}, v88, v88")
            else:
                a(f"v_fma_f32 v{92+r}, v88, v88, v{92+r}")
    wave_sum(list(range(92, 96)))
    for r in range(4):
        X = 48 + 8 * r
        a(f"v_mul_f32 v{92+r}, 0x3b000000, v{92+r}")
        bf16r(a, 92 + r, 92 + r)
        a(f"v_add_f32 v{92+r}, 0x3727c5ac, v{92+r}")
        bf16r(a, 92 + r, 92 + r)
        a(f"v_sqrt_f32 v{92+r}, v{92+r}")
        a("s_nop 0")
        bf16r(a, 92 + r, 92 + r)
        a(f"v_rcp_f32 v{92+r}, v{92+r}")
        bf16r(a, 80 + r, 80 + r)
        for k in range(4):
            a(f"v_sub_f32 v88, v{X+2*k}, v{80+r}")
            a(f"v_sub_f32 v89, v{X+2*k+1}, v{80+r}")
            a(f"v_cvt_pk_bf16_f32 v88, v88, v89")
            a(f"v_lshlrev_b32 v89, 16, v88")
            a(f"v_and_b32 v88, 0xffff0000, v88")
            a(f"v_mul_f32 v89, v89, v{92+r}")
            a(f"v_mul_f32 v88, v88, v{92+r}")
            a(f"v_cvt_pk_bf16_f32 v{96+4*r+k}, v89, v88")
        a(f"s_add_u32 s42, s41, {r*1024}")
        a(f"buffer_store_dwordx4 v[{96+4*r}:{99+4*r}], v2, s[24:27], s42 offen")
        bf16r(a, 84 + r, 84 + r)
        a(f"v_mul_f32 v{84+r}, 0xbfb8aa3b, v{84+r}")
        a(f"v_exp_f32 v{84+r}, v{84+r}")
        a("s_nop 0")
        a(f"v_add_f32 v{84+r}, 1.0, v{84+r}")
        a(f"v_rcp_f32 v{84+r}, v{84+r}")
        a("s_nop 0")
        bf16r(a, 84 + r, 84 + r)
    a("v_mov_b32 v88, v84")
    a("v_cmp_eq_u32 vcc, 1, v1")
    a("s_nop 1")
    a("v_cndmask_b32 v88, v88, v85, vcc")
    a("v_cmp_eq_u32 vcc, 2, v1")
    a("s_nop 1")
    a("v_cndmask_b32 v88, v88, v86, vcc")
    a("v_cmp_eq_u32 vcc, 3, v1")
    a("s_nop 1")
    a("v_cndmask_b32 v88, v88, v87, vcc")
    a("v_lshlrev_b32 v89, 2, v1")
    a("s_lshl_b32 s42, s40, 4")
    a("v_cmp_gt_u32 vcc, 4, v1")
    a("s_and_saveexec_b64 s[50:51], vcc")
    a("buffer_store_dword v88, v89, s[28:31], s42 offen")
    a.label("L_k1_end")
    a("s_endpgm")


def write_partials(a, s_wb):
    a("v_and_b32 v14, 31, v1")
    a("v_mul_u32_u24 v14, 272, v14")
    a("v_lshrrev_b32 v15, 5, v1")
    a("v_lshl_add_u32 v14, v15, 4, v14")
    a(f"v_add_u32 v14, s{s_wb}, v14")
    a("s_nop 15")
    for qm in range(2):
        for qn in range(2):
            for j in range(4):
                acc = 64 + (qm * 2 + qn) * 16 + 4 * j
                off = qn * 32 * 272 + (qm * 32 + 8 * j) * 4
                a(f"ds_write_b128 v14, v[{acc}:{acc+3}] offset:{off}")
    a("s_waitcnt lgkmcnt(0)")
    a("s_barrier")


def k2(a):
    kernel_header(a, "k2_kernel")
    a("s_cmp_ge_u32 s2, 256")
    a("s_cbranch_scc1 L_k2_end")
    a("v_and_b32 v1, 63, v0")
    a("v_lshrrev_b32 v2, 6, v0")
    a("s_load_dwordx2 s[4:5], s[0:1], 136")
    a("s_nop 0")
    a("v_readfirstlane_b32 s3, v2")
    a("s_cmp_ge_u32 s2, 192")
    a("s_cbranch_scc1 L_k2_scan")
    a("s_and_b32 s40, s2, 7")
    a("s_lshr_b32 s41, s2, 6")
    a("s_lshl_b32 s41, s41, 3")
    a("s_add_u32 s40, s40, s41")
    a("s_cmp_ge_u32 s40, 22")
    a("s_cbranch_scc1 L_k2_end")
    a("s_lshr_b32 s41, s2, 3")
    a("s_and_b32 s41, s41, 7")
    srd_input(a, 8, 'w1', 0)
    srd_input(a, 12, 'b1', 0)
    a("s_waitcnt lgkmcnt(0)")
    srd_finish(a, 8, 2048 * 1376 * 2)
    srd_finish(a, 12, 1376 * 2)
    srd_ws(a, 16, 4, 'hln')
    srd_ws(a, 20, 4, 'u')
    a("s_lshl_b32 s42, s3, 15")
    a("s_mul_i32 s43, s3, %d" % (512 * 2752))
    a("s_lshl_b32 s46, s40, 7")
    a("s_add_u32 s43, s43, s46")
    a("s_lshl_b32 s44, s3, 19")
    a("s_lshl_b32 s46, s41, 7")
    a("s_add_u32 s44, s44, s46")
    a("v_and_b32 v20, 3, v0")
    a("v_lshlrev_b32 v20, 5, v20")
    a("s_lshl_b32 s46, s40, 7")
    a("buffer_load_dwordx4 v[24:27], v20, s[12:15], s46 offen")
    a("buffer_load_dwordx4 v[28:31], v20, s[12:15], s46 offen offset:16")
    opA = Op('KM', [8] * 8, 2752, 43, 2, 6)
    opB = Op('KM', [16] * 8, 1024, 44, 4, 10)
    setup_op(a, opA, 42, 0)
    setup_op(a, opB, 42, 1)
    gemm_loop(a, [opA, opB], 8, 42, 45)
    write_partials(a, 42)
    a("v_lshrrev_b32 v14, 2, v0")
    a("v_mul_u32_u24 v15, 272, v14")
    a("v_and_b32 v16, 3, v0")
    a("v_lshl_add_u32 v15, v16, 6, v15")
    a("v_add_u32 v18, 0x10000, v15")
    for w in range(4):
        for i in range(4):
            a(f"ds_read_b128 v[{64+w*16+i*4}:{67+w*16+i*4}], v{15 if w < 2 else 18} offset:{(w&1)*32768+i*16}")
    a("s_waitcnt lgkmcnt(0)")
    for i in range(16):
        a(f"v_add_f32 v{64+i}, v{64+i}, v{80+i}")
        a(f"v_add_f32 v{96+i}, v{96+i}, v{112+i}")
    for i in range(16):
        a(f"v_add_f32 v{64+i}, v{64+i}, v{96+i}")
    for k in range(8):
        a(f"v_cvt_pk_bf16_f32 v80, v{64+2*k}, v{65+2*k}")
        a(f"v_lshlrev_b32 v81, 16, v80")
        a(f"v_and_b32 v80, 0xffff0000, v80")
        a(f"v_lshlrev_b32 v82, 16, v{24+k}")
        a(f"v_and_b32 v83, 0xffff0000, v{24+k}")
        a(f"v_add_f32 v81, v81, v82")
        a(f"v_add_f32 v80, v80, v83")
        a(f"v_cvt_pk_bf16_f32 v80, v81, v80")
        a(f"v_lshlrev_b32 v{64+2*k}, 16, v80")
        a(f"v_and_b32 v{65+2*k}, 0xffff0000, v80")
    c1 = -2 * 0.7978845608028654 * 1.4426950408889634
    c2 = c1 * 0.044715
    import struct
    f2u = lambda f: struct.unpack("<I", struct.pack("<f", f))[0]
    a(f"s_mov_b32 s46, {f2u(c1):#x}")
    a(f"s_mov_b32 s47, {f2u(c2):#x}")
    a(f"v_mov_b32 v100, s46")
    for i in range(16):
        a(f"v_mul_f32 v{80+i}, v{64+i}, v{64+i}")
        a(f"v_fma_f32 v{80+i}, v{80+i}, s47, v100")
        a(f"v_mul_f32 v{80+i}, v{80+i}, v{64+i}")
        a(f"v_exp_f32 v{80+i}, v{80+i}")
    for i in range(16):
        a(f"v_add_f32 v{80+i}, 1.0, v{80+i}")
        a(f"v_rcp_f32 v{80+i}, v{80+i}")
    a("s_nop 0")
    for i in range(16):
        a(f"v_mul_f32 v{64+i}, v{64+i}, v{80+i}")
    for k in range(8):
        a(f"v_cvt_pk_bf16_f32 v{80+k}, v{64+2*k}, v{65+2*k}")
    a("s_lshl_b32 s46, s40, 6")
    a("v_lshl_add_u32 v17, v16, 4, s46")
    a("v_cmp_gt_u32 vcc, 1376, v17")
    a("s_nop 1")
    for k in range(8):
        a(f"v_cndmask_b32 v{80+k}, 0, v{80+k}, vcc")
    a("s_lshl_b32 s46, s41, 6")
    a("v_add_u32 v14, s46, v14")
    a(f"v_mul_u32_u24 v14, {URS}, v14")
    a("v_lshl_add_u32 v14, v17, 1, v14")
    a("buffer_store_dwordx4 v[80:83], v14, s[20:23], 0 offen")
    a("buffer_store_dwordx4 v[84:87], v14, s[20:23], 0 offen offset:16")
    a("s_endpgm")

    a.label("L_k2_scan")
    srd_input(a, 20, 'lre', 0)
    srd_input(a, 24, 'lim', 0)
    srd_input(a, 28, 'ldt', 0)
    a("s_waitcnt lgkmcnt(0)")
    srd_finish(a, 20, 1024)
    srd_finish(a, 24, 1024)
    srd_finish(a, 28, 1024)
    srd_ws(a, 32, 4, 'xx')
    srd_ws(a, 36, 4, 'e')
    srd_ws(a, 8, 4, 'h')
    a("s_sub_u32 s40, s2, 192")
    a("s_lshl_b32 s40, s40, 2")
    a("s_add_u32 s40, s40, s3")
    a("s_and_b32 s41, s40, 15")
    a("s_lshr_b32 s40, s40, 4")
    a("v_and_b32 v14, 31, v1")
    a("s_lshl_b32 s46, s41, 5")
    a("v_add_u32 v14, s46, v14")
    a("v_lshlrev_b32 v15, 3, v14")
    for j in range(64):
        a(f"s_mov_b32 s46, {j*4096}")
        a(f"buffer_load_dwordx2 v[{128+2*j}:{129+2*j}], v15, s[36:39], s46 offen")
    lam_consts(a, 14, 20, 24, 28, 20, True)
    a("v_mov_b32 v24, v20")
    a("v_mov_b32 v25, v21")
    for _ in range(5):
        a("v_mul_f32 v26, v25, v25")
        a("v_mul_f32 v27, v24, v25")
        a("v_fma_f32 v24, v24, v24, -v26")
        a("v_add_f32 v25, v27, v27")
    a("v_cmp_lt_u32 s[50:51], 31, v1")
    a("v_lshlrev_b32 v16, 4, v1")
    a("v_lshrrev_b32 v17, 5, v1")
    a("v_lshlrev_b32 v17, 16, v17")
    a("v_lshl_add_u32 v17, v14, 2, v17")
    a("s_mov_b32 s48, 0")
    a.label("L_k2_it")
    a("s_lshl_b32 s46, s40, 4")
    a("s_add_u32 s46, s46, s41")
    a("s_lshl_b32 s46, s46, 14")
    for qd in range(16):
        a(f"s_add_u32 s47, s46, {qd*1024}")
        a(f"buffer_load_dwordx4 v[{64+qd*4}:{67+qd*4}], v16, s[32:35], s47 offen")
    a("s_lshl_b32 s49, s40, 1")
    a("s_lshl_b32 s46, s49, 12")
    a("buffer_load_dwordx2 v[30:31], v15, s[36:39], s46 offen")
    a("v_mov_b32 v28, 0")
    a("v_mov_b32 v29, 0")
    for j in range(62):
        a(f"s_cmp_le_u32 s49, {j}")
        a("s_cbranch_scc1 L_k2_hd")
        a(f"v_fma_f32 v26, -v25, v29, v{128+2*j}")
        a(f"v_fma_f32 v27, v25, v28, v{129+2*j}")
        a(f"v_fma_f32 v28, v24, v28, v26")
        a(f"v_fma_f32 v29, v24, v29, v27")
    a.label("L_k2_hd")
    a("s_waitcnt vmcnt(0)")
    a(f"v_fma_f32 v26, -v25, v29, v30")
    a(f"v_fma_f32 v27, v25, v28, v31")
    a(f"v_fma_f32 v26, v24, v28, v26")
    a(f"v_fma_f32 v27, v24, v29, v27")
    a("v_cndmask_b32 v28, v28, v26, s[50:51]")
    a("v_cndmask_b32 v29, v29, v27, s[50:51]")
    a("s_lshl_b32 s46, s40, 17")
    for t in range(32):
        qm, i = t >> 4, t & 15
        xr = 64 + (qm * 2 + 0) * 16 + i
        xi = 64 + (qm * 2 + 1) * 16 + i
        pk = 32 + (t & 7)
        a(f"v_fma_f32 v26, -v21, v29, v{xr}")
        a(f"v_fma_f32 v27, v21, v28, v{xi}")
        a(f"v_fma_f32 v28, v20, v28, v26")
        a(f"v_fma_f32 v29, v20, v29, v27")
        a(f"v_mul_f32 v26, v22, v28")
        a(f"v_mul_f32 v27, v22, v29")
        a(f"v_fma_f32 v26, -v23, v29, v26")
        a(f"v_fma_f32 v27, v23, v28, v27")
        a(f"v_cvt_pk_bf16_f32 v{pk}, v26, v27")
        a(f"s_add_u32 s47, s46, {t*2048}")
        a(f"buffer_store_dword v{pk}, v17, s[8:11], s47 offen")
    a("s_sub_u32 s40, 31, s40")
    a("s_add_u32 s48, s48, 1")
    a("s_cmp_lt_u32 s48, 2")
    a("s_cbranch_scc1 L_k2_it")
    a.label("L_k2_end")
    a("s_endpgm")


def k3(a):
    kernel_header(a, "k3_kernel")
    a("s_cmp_ge_u32 s2, 256")
    a("s_cbranch_scc1 L_k3_end")
    a("v_and_b32 v1, 63, v0")
    a("v_lshrrev_b32 v2, 6, v0")
    a("s_load_dwordx2 s[4:5], s[0:1], 136")
    srd_input(a, 8, 'w2', 0)
    srd_input(a, 24, 'x', 0)
    srd_input(a, 28, 'dsk', 0)
    srd_input(a, 32, 'b2', 0)
    srd_input(a, 52, 'out', 0)
    a("v_readfirstlane_b32 s3, v2")
    a("s_waitcnt lgkmcnt(0)")
    srd_finish(a, 8, 1376 * 2048 * 2)
    srd_finish(a, 24, 2048 * 512 * 2)
    srd_finish(a, 28, 1024)
    srd_finish(a, 32, 4096)
    srd_finish(a, 52, 2048 * 512 * 4)
    srd_ws(a, 12, 4, 'u')
    srd_ws(a, 16, 4, 'cp')
    srd_ws(a, 20, 4, 'h')
    srd_ws(a, 36, 4, 'g')
    a("s_and_b32 s40, s2, 7")
    a("s_lshl_b32 s40, s40, 2")
    a("s_lshr_b32 s41, s2, 6")
    a("s_add_u32 s40, s40, s41")
    a("s_lshr_b32 s41, s2, 3")
    a("s_and_b32 s41, s41, 7")
    a("s_lshl_b32 s42, s3, 15")
    a("v_lshrrev_b32 v20, 2, v0")
    a("s_lshl_b32 s46, s40, 6")
    a("v_add_u32 v20, s46, v20")
    a("v_and_b32 v21, 3, v0")
    a("v_lshlrev_b32 v21, 4, v21")
    a("s_lshl_b32 s46, s41, 6")
    a("v_add_u32 v21, s46, v21")
    a("v_lshl_add_u32 v22, v20, 9, v21")
    a("v_lshlrev_b32 v23, 1, v22")
    a("buffer_load_dwordx4 v[128:131], v23, s[24:27], 0 offen")
    a("buffer_load_dwordx4 v[132:135], v23, s[24:27], 0 offen offset:16")
    a("v_lshlrev_b32 v23, 1, v21")
    a("buffer_load_dwordx4 v[136:139], v23, s[28:31], 0 offen")
    a("buffer_load_dwordx4 v[140:143], v23, s[28:31], 0 offen offset:16")
    a("v_lshlrev_b32 v23, 1, v20")
    a("buffer_load_ushort v144, v23, s[32:35], 0 offen")
    a("v_lshlrev_b32 v23, 2, v20")
    a("buffer_load_dword v145, v23, s[36:39], 0 offen")
    a("s_cmp_ge_u32 s3, 2")
    a("s_cbranch_scc1 L_k3_ssm")
    a(f"s_mul_i32 s43, s41, {64*URS}")
    a(f"s_mul_i32 s46, s3, {11*128}")
    a("s_add_u32 s43, s43, s46")
    a(f"s_mul_i32 s44, s3, {11*64*4096}")
    a("s_lshl_b32 s46, s40, 7")
    a("s_add_u32 s44, s44, s46")
    opA = Op('KC', [12] * 8, URS, 43, 2, 6)
    opB = Op('KM', [8] * 8, 4096, 44, 4, 10)
    setup_op(a, opA, 42, 0)
    setup_op(a, opB, 42, 1)
    gemm_loop(a, [opA, opB], 11, 42, 45)
    a("s_branch L_k3_red")
    a.label("L_k3_ssm")
    a("s_sub_u32 s47, s3, 2")
    a("s_lshl_b32 s47, s47, 10")
    a("s_lshl_b32 s43, s41, 17")
    a("s_add_u32 s43, s43, s47")
    a("s_lshl_b32 s44, s40, 17")
    a("s_add_u32 s44, s44, s47")
    opA = Op('KC', [16] * 8, 2048, 43, 2, 6)
    opB = Op('KC', [20] * 8, 2048, 44, 4, 10)
    setup_op(a, opA, 42, 0)
    setup_op(a, opB, 42, 1)
    gemm_loop(a, [opA, opB], 8, 42, 45)
    a.label("L_k3_red")
    write_partials(a, 42)
    a("v_lshrrev_b32 v14, 2, v0")
    a("v_mul_u32_u24 v15, 272, v14")
    a("v_and_b32 v16, 3, v0")
    a("v_lshl_add_u32 v15, v16, 6, v15")
    a("v_add_u32 v18, 0x10000, v15")
    for w in range(4):
        for i in range(4):
            a(f"ds_read_b128 v[{64+w*16+i*4}:{67+w*16+i*4}], v{15 if w < 2 else 18} offset:{(w&1)*32768+i*16}")
    a("s_waitcnt lgkmcnt(0)")
    for i in range(16):
        a(f"v_add_f32 v{64+i}, v{64+i}, v{80+i}")
        a(f"v_add_f32 v{96+i}, v{96+i}, v{112+i}")
    a("v_lshlrev_b32 v144, 16, v144")
    a("v_sub_f32 v146, 1.0, v145")
    bf16r(a, 146, 146)
    for k in range(8):
        a(f"v_cvt_pk_bf16_f32 v80, v{64+2*k}, v{65+2*k}")
        a(f"v_lshlrev_b32 v81, 16, v80")
        a(f"v_and_b32 v80, 0xffff0000, v80")
        a(f"v_add_f32 v81, v81, v144")
        a(f"v_add_f32 v80, v80, v144")
        a(f"v_cvt_pk_bf16_f32 v80, v81, v80")
        a(f"v_lshlrev_b32 v81, 16, v80")
        a(f"v_and_b32 v80, 0xffff0000, v80")
        a(f"v_mul_f32 v81, v81, v146")
        a(f"v_mul_f32 v80, v80, v146")
        a(f"v_cvt_pk_bf16_f32 v80, v81, v80")
        a(f"v_lshlrev_b32 v{64+2*k}, 16, v80")
        a(f"v_and_b32 v{65+2*k}, 0xffff0000, v80")
        a(f"v_lshlrev_b32 v81, 16, v{128+k}")
        a(f"v_and_b32 v80, 0xffff0000, v{128+k}")
        a(f"v_lshlrev_b32 v82, 16, v{136+k}")
        a(f"v_and_b32 v83, 0xffff0000, v{136+k}")
        a(f"v_mul_f32 v81, v81, v82")
        a(f"v_mul_f32 v80, v80, v83")
        a(f"v_cvt_pk_bf16_f32 v80, v81, v80")
        a(f"v_lshlrev_b32 v81, 16, v80")
        a(f"v_and_b32 v80, 0xffff0000, v80")
        a(f"v_fma_f32 v81, 2.0, v{96+2*k}, v81")
        a(f"v_fma_f32 v80, 2.0, v{97+2*k}, v80")
        a(f"v_mul_f32 v81, v81, v145")
        a(f"v_mul_f32 v80, v80, v145")
        a(f"v_add_f32 v{64+2*k}, v{64+2*k}, v81")
        a(f"v_add_f32 v{65+2*k}, v{65+2*k}, v80")
    a("v_lshlrev_b32 v23, 2, v22")
    for i in range(4):
        a(f"buffer_store_dwordx4 v[{64+4*i}:{67+4*i}], v23, s[52:55], 0 offen offset:{16*i}")
    a.label("L_k3_end")
    a("s_endpgm")


def main():
    ref = open(f"cdna_kernels/{NAME}.s.ref").read().split("\n")
    head = [l for l in ref if l.startswith(";") and "@launch" not in l and "Override" not in l and "grid=ceil" not in l]
    out = head + [
        "; @launch kernel=k1_kernel grid=(512,1,1) block=(128,1,1) lds=65536",
        "; @launch kernel=k2_kernel grid=(256,1,1) block=(256,1,1) lds=131072",
        "; @launch kernel=k3_kernel grid=(256,1,1) block=(256,1,1) lds=131072",
        '.amdgcn_target "amdgcn-amd-amdhsa--gfx950"',
        ".text",
    ]
    a = Asm()
    k1(a)
    k2(a)
    k3(a)
    out += a.lines
    out.append('.section .rodata,"a"')
    out.append(kd("k1_kernel", 128))
    out.append(kd("k2_kernel", 256))
    out.append(kd("k3_kernel", 152))
    path = sys.argv[1] if len(sys.argv) > 1 else f"cdna_kernels/{NAME}.s"
    open(path, "w").write("\n".join(out) + "\n")


main()
```

```python
import sys

NAME = "gated_mix__ssm_conv_s5__mixer_token_mlp__prompt"

KA = dict(x=0, lre=8, lim=16, bre=24, bim=32, cre=40, cim=48, ldt=56, dsk=64,
          w1=80, b1=88, w2=96, b2=104, gw=112, out=120, dbg=128, ws=136)

WS = dict(
    hln=(0x0000000, 2048 * 512 * 2),
    g=(0x0200000, 2048 * 4),
    cp=(0x0300000, 512 * 1024 * 2),
    xx=(0x0400000, 512 * 16384),
    e=(0x0C00000, 64 * 512 * 8),
    u=(0x0D00000, 512 * 1408 * 2),
    h=(0x1000000, 2048 * 1024 * 2),
)
URS = 1408 * 2


import os
STAMPS = os.environ.get("STAMPS") == "1"


class Asm:
    def __init__(self):
        self.lines = []
        self.uid = 0

    def stamp(self, idx):
        if STAMPS:
            self(f"s_memrealtime s[{70+2*idx}:{71+2*idx}]")
            self("s_waitcnt lgkmcnt(0)")

    def stamp_flush(self, kidx, n):
        if not STAMPS:
            return
        self("s_add_u32 s96, s4, 0x2000000")
        self("s_addc_u32 s97, s5, 0")
        self("s_and_b32 s97, s97, 0xffff")
        self("s_mov_b32 s98, 0x100000")
        self("s_mov_b32 s99, 0x00020000")
        self(f"s_add_u32 s100, s2, {kidx*512}")
        self("s_lshl_b32 s100, s100, 2")
        self("s_add_u32 s100, s100, s3")
        self("s_lshl_b32 s100, s100, 6")
        self("s_mov_b64 exec, 1")
        self("v_mov_b32 v0, 0")
        for i in range(n):
            self(f"v_mov_b32 v2, s{70+2*i}")
            self(f"buffer_store_dword v2, v0, s[96:99], s100 offen offset:{4*i}")

    def __call__(self, s):
        self.lines.append("    " + s)

    def label(self, l):
        self.lines.append(l + ":")

    def newlabel(self, p):
        self.uid += 1
        return f"L_{p}_{self.uid}"

    def raw(self, s):
        self.lines.append(s)


def srd_input(a, sreg, key, nbytes):
    a(f"s_load_dwordx2 s[{sreg}:{sreg+1}], s[0:1], {KA[key]}")


def srd_finish(a, sreg, nbytes):
    a(f"s_and_b32 s{sreg+1}, s{sreg+1}, 0xffff")
    a(f"s_mov_b32 s{sreg+2}, {nbytes}")
    a(f"s_mov_b32 s{sreg+3}, 0x00020000")


def srd_ws(a, sreg, wsreg, key):
    off, size = WS[key]
    a(f"s_add_u32 s{sreg}, s{wsreg}, {off}")
    a(f"s_addc_u32 s{sreg+1}, s{wsreg+1}, 0")
    a(f"s_and_b32 s{sreg+1}, s{sreg+1}, 0xffff")
    a(f"s_mov_b32 s{sreg+2}, {size}")
    a(f"s_mov_b32 s{sreg+3}, 0x00020000")


class Op:
    def __init__(self, kind, srds, rs, scur, vdma, vfrag, perm=False):
        self.kind = kind
        self.srds = srds
        self.rs = rs
        self.scur = scur
        self.vdma = vdma
        self.vfrag = vfrag
        self.perm = perm
        self.rowoff = [i * 8 * rs for i in range(8)]


def setup_op(a, op, s_wb, opidx):
    rs = op.rs
    a(f"v_lshrrev_b32 v14, 3, v1")
    a(f"v_mul_u32_u24 v14, {rs}, v14")
    a(f"v_and_b32 v15, 7, v1")
    if op.kind == 'KC':
        a(f"v_lshrrev_b32 v16, 4, v1")
        a(f"v_xor_b32 v15, v15, v16")
        a(f"v_lshlrev_b32 v15, 4, v15")
        a(f"v_add_u32 v{op.vdma}, v14, v15")
        a(f"v_xor_b32 v15, 64, v15")
        a(f"v_add_u32 v{op.vdma+1}, v14, v15")
        a(f"v_and_b32 v14, 31, v1")
        if op.perm:
            a(f"v_lshrrev_b32 v15, 2, v14")
            a(f"v_and_b32 v15, 1, v15")
            a(f"v_lshlrev_b32 v15, 5, v15")
            a(f"v_lshrrev_b32 v16, 3, v14")
            a(f"v_lshl_add_u32 v15, v16, 2, v15")
            a(f"v_and_b32 v14, 3, v14")
            a(f"v_add_u32 v14, v14, v15")
        a(f"v_lshrrev_b32 v15, 1, v14")
        a(f"v_and_b32 v15, 7, v15")
        a(f"v_lshrrev_b32 v16, 5, v1")
        a(f"v_xor_b32 v15, v15, v16")
        a(f"v_lshlrev_b32 v15, 4, v15")
        a(f"v_lshl_add_u32 v14, v14, 7, v15")
        a(f"v_add_u32 v{op.vfrag}, s{s_wb}, v14")
        for j in range(1, 4):
            a(f"v_xor_b32 v{op.vfrag+j}, {j<<5}, v{op.vfrag}")
    else:
        a(f"v_lshrrev_b32 v16, 2, v1")
        a(f"v_and_b32 v16, 4, v16")
        a(f"v_xor_b32 v15, v15, v16")
        a(f"v_lshl_add_u32 v{op.vdma}, v15, 4, v14")
        a(f"v_lshrrev_b32 v14, 5, v1")
        a(f"v_lshlrev_b32 v14, 3, v14")
        a(f"v_lshrrev_b32 v15, 2, v1")
        a(f"v_and_b32 v15, 3, v15")
        a(f"v_add_u32 v14, v14, v15")
        a(f"v_lshlrev_b32 v14, 7, v14")
        a(f"v_lshrrev_b32 v16, 4, v1")
        a(f"v_and_b32 v16, 1, v16")
        a(f"v_lshlrev_b32 v16, 1, v16")
        a(f"v_lshrrev_b32 v17, 1, v1")
        a(f"v_and_b32 v17, 1, v17")
        a(f"v_add_u32 v16, v16, v17")
        a(f"v_lshrrev_b32 v15, 1, v15")
        a(f"v_lshlrev_b32 v15, 2, v15")
        a(f"v_xor_b32 v16, v16, v15")
        a(f"v_lshl_add_u32 v14, v16, 4, v14")
        a(f"v_and_b32 v17, 1, v1")
        a(f"v_lshl_add_u32 v14, v17, 3, v14")
        a(f"v_add_u32 v{op.vfrag}, s{s_wb}, v14")
        a(f"v_xor_b32 v{op.vfrag+1}, 64, v{op.vfrag}")


def dma_stage(a, ops, slot, s_wb, s_t):
    out = []
    for oi, op in enumerate(ops):
        for i in range(8):
            lds = slot * 16384 + oi * 8192 + i * 1024
            v = op.vdma + ((i & 1) if op.kind == 'KC' else 0)
            out.append([f"s_add_u32 m0, s{s_wb}, {lds}",
                        f"s_add_u32 s{s_t}, s{op.scur}, {op.rowoff[i]}",
                        f"buffer_load_dwordx4 v{v}, s[{op.srds[i]}:{op.srds[i]+3}], s{s_t} offen lds"])
        adv = 128 if op.kind == 'KC' else 64 * op.rs
        out[-1].append(f"s_add_u32 s{op.scur}, s{op.scur}, {adv}")
    return out


FR = 160


def frag_reads(a, ops, slot, j):
    n = 0
    for oi, op in enumerate(ops):
        for q in range(2):
            dst = FR + j * 16 + oi * 8 + q * 4
            base = slot * 16384 + oi * 8192
            if op.kind == 'KC':
                off = base + q * (2048 if op.perm else 4096)
                a(f"ds_read_b128 v[{dst}:{dst+3}], v{op.vfrag+j} offset:{off}")
                n += 1
            else:
                off = base + j * 2048
                a(f"ds_read_b64_tr_b16 v[{dst}:{dst+1}], v{op.vfrag+q} offset:{off}")
                a(f"ds_read_b64_tr_b16 v[{dst+2}:{dst+3}], v{op.vfrag+q} offset:{off+512}")
                n += 2
    return n


def mfmas(j):
    r = []
    for qm in range(2):
        for qn in range(2):
            acc = 64 + (qm * 2 + qn) * 16
            A = FR + j * 16 + qm * 4
            B = FR + j * 16 + 8 + qn * 4
            r.append(f"v_mfma_f32_32x32x16_bf16 v[{acc}:{acc+15}], v[{A}:{A+3}], v[{B}:{B+3}], v[{acc}:{acc+15}]")
    return r


def gemm_loop(a, ops, n, s_wb, s_t):
    a.stamp(0)
    for st in range(min(2, n)):
        for grp in dma_stage(a, ops, st & 1, s_wb, s_t):
            for l in grp:
                a(l)
    for r in range(64, 128):
        a(f"v_mov_b32 v{r}, 0")
    for st in range(n):
        slot = st & 1
        a(f"s_waitcnt vmcnt({16 if st + 1 < n else 0})")
        if st == 0:
            a.stamp(1)
        if st == 1:
            a.stamp(4)
        for j in range(4):
            frag_reads(a, ops, slot, j)
        a("s_waitcnt lgkmcnt(0)")
        grps = dma_stage(a, ops, slot, s_wb, s_t) if st + 2 < n else []
        k = 0
        for j in range(4):
            for m in mfmas(j):
                if k < len(grps):
                    for l in grps[k]:
                        a(l)
                k += 1
                a(m)
    a.stamp(2)


def bf16r(a, dst, src):
    a(f"v_cvt_pk_bf16_f32 v{dst}, v{src}, v{src}")
    a(f"v_lshlrev_b32 v{dst}, 16, v{dst}")


def lam_consts(a, vp, s_lre, s_lim, s_ldt, base, need_coef):
    lr, li, cr, ci = base, base + 1, base + 2, base + 3
    t = base + 4
    a(f"v_lshlrev_b32 v{t}, 1, v{vp}")
    a(f"buffer_load_ushort v{t+1}, v{t}, s[{s_lre}:{s_lre+3}], 0 offen")
    a(f"buffer_load_ushort v{t+2}, v{t}, s[{s_lim}:{s_lim+3}], 0 offen")
    a(f"buffer_load_ushort v{t+3}, v{t}, s[{s_ldt}:{s_ldt+3}], 0 offen")
    a("s_waitcnt vmcnt(0)")
    a(f"v_lshlrev_b32 v{t+1}, 16, v{t+1}")
    a(f"v_lshlrev_b32 v{t+2}, 16, v{t+2}")
    a(f"v_lshlrev_b32 v{t+3}, 16, v{t+3}")
    a(f"v_mul_f32 v{t+3}, 0x3fb8aa3b, v{t+3}")
    a(f"v_exp_f32 v{t+3}, v{t+3}")
    a("s_nop 0")
    bf16r(a, t + 3, t + 3)
    a(f"v_mul_f32 v{t+4}, v{t+3}, v{t+1}")
    a(f"v_mul_f32 v{t+5}, v{t+3}, v{t+2}")
    a(f"v_mul_f32 v{t+4}, 0x3fb8aa3b, v{t+4}")
    a(f"v_exp_f32 v{t+4}, v{t+4}")
    a(f"v_mul_f32 v{t+5}, 0.15915494, v{t+5}")
    a(f"v_fract_f32 v{t+5}, v{t+5}")
    a(f"v_cos_f32 v{t+6}, v{t+5}")
    a(f"v_sin_f32 v{t+7}, v{t+5}")
    a("s_nop 0")
    a(f"v_mul_f32 v{lr}, v{t+4}, v{t+6}")
    a(f"v_mul_f32 v{li}, v{t+4}, v{t+7}")
    if need_coef:
        a(f"v_add_f32 v{t+4}, -1.0, v{lr}")
        a(f"v_mul_f32 v{t+5}, v{t+1}, v{t+1}")
        a(f"v_fma_f32 v{t+5}, v{t+2}, v{t+2}, v{t+5}")
        a(f"v_rcp_f32 v{t+5}, v{t+5}")
        a(f"v_mul_f32 v{t+6}, v{t+4}, v{t+1}")
        a(f"v_fma_f32 v{t+6}, v{li}, v{t+2}, v{t+6}")
        a(f"v_mul_f32 v{t+7}, v{li}, v{t+1}")
        a(f"v_fma_f32 v{t+7}, -v{t+4}, v{t+2}, v{t+7}")
        a(f"v_mul_f32 v{cr}, v{t+6}, v{t+5}")
        a(f"v_mul_f32 v{ci}, v{t+7}, v{t+5}")


def kernel_header(a, name):
    a.raw(f".globl {name}")
    a.raw(".p2align 8")
    a.raw(f".type {name},@function")
    a.label(name)


def kd(name, vgpr, sgpr=102):
    acc = (vgpr + 3) // 4 * 4
    return f""".p2align 6
.amdhsa_kernel {name}
  .amdhsa_next_free_vgpr {vgpr}
  .amdhsa_next_free_sgpr {sgpr}
  .amdhsa_accum_offset {acc}
  .amdhsa_group_segment_fixed_size 0
  .amdhsa_kernarg_size 144
  .amdhsa_user_sgpr_count 2
  .amdhsa_user_sgpr_kernarg_segment_ptr 1
  .amdhsa_system_sgpr_workgroup_id_x 1
.end_amdhsa_kernel
"""


def k1(a):
    kernel_header(a, "k1_kernel")
    a("s_cmp_ge_u32 s2, 512")
    a("s_cbranch_scc1 L_k1_end")
    a("v_and_b32 v1, 63, v0")
    a("v_lshrrev_b32 v2, 6, v0")
    a("s_load_dwordx2 s[4:5], s[0:1], 136")
    a("s_nop 0")
    a("v_readfirstlane_b32 s3, v2")
    a("s_cmp_ge_u32 s2, 256")
    a("s_cbranch_scc1 L_k1_ln")
    srd_input(a, 8, 'x', 0)
    srd_input(a, 12, 'bre', 0)
    srd_input(a, 16, 'bim', 0)
    srd_input(a, 20, 'lre', 0)
    srd_input(a, 24, 'lim', 0)
    srd_input(a, 28, 'ldt', 0)
    a("s_waitcnt lgkmcnt(0)")
    srd_finish(a, 8, 2048 * 512 * 2)
    srd_finish(a, 12, 512 * 512 * 2)
    srd_finish(a, 16, 512 * 512 * 2)
    srd_finish(a, 20, 1024)
    srd_finish(a, 24, 1024)
    srd_finish(a, 28, 1024)
    srd_ws(a, 32, 4, 'xx')
    srd_ws(a, 36, 4, 'e')
    a("s_and_b32 s40, s2, 7")
    a("s_lshl_b32 s40, s40, 2")
    a("s_lshr_b32 s41, s2, 6")
    a("s_add_u32 s40, s40, s41")
    a("s_lshr_b32 s41, s2, 3")
    a("s_and_b32 s41, s41, 7")
    a("s_lshl_b32 s41, s41, 1")
    a("s_add_u32 s41, s41, s3")
    a("s_lshl_b32 s42, s3, 15")
    a("s_lshl_b32 s43, s40, 16")
    a("s_lshl_b32 s44, s41, 15")
    opA = Op('KC', [8] * 8, 1024, 43, 2, 6, perm=True)
    opB = Op('KC', [12] * 4 + [16] * 4, 1024, 44, 4, 10)
    opB.rowoff = [(i & 3) * 8 * 1024 for i in range(8)]
    setup_op(a, opA, 42, 0)
    setup_op(a, opB, 42, 1)
    gemm_loop(a, [opA, opB], 8, 42, 45)
    a("v_and_b32 v14, 31, v1")
    a("s_lshl_b32 s46, s41, 5")
    a("v_add_u32 v14, s46, v14")
    lam_consts(a, 14, 20, 24, 28, 20, False)
    a("s_lshl_b32 s46, s40, 4")
    a("s_add_u32 s46, s46, s41")
    a("s_lshl_b32 s46, s46, 14")
    a("v_lshlrev_b32 v15, 4, v1")
    a("s_nop 7")
    for qd in range(16):
        a(f"s_add_u32 s47, s46, {qd*1024}")
        a(f"buffer_store_dwordx4 v[{64+qd*4}:{64+qd*4+3}], v15, s[32:35], s47 offen")
    a("v_mov_b32 v16, 0")
    a("v_mov_b32 v17, 0")
    for t in range(32):
        qm, i = t >> 4, t & 15
        xr = 64 + (qm * 2 + 0) * 16 + i
        xi = 64 + (qm * 2 + 1) * 16 + i
        a(f"v_fma_f32 v18, -v21, v17, v{xr}")
        a(f"v_fma_f32 v19, v21, v16, v{xi}")
        a(f"v_fma_f32 v16, v20, v16, v18")
        a(f"v_fma_f32 v17, v20, v17, v19")
    a("v_lshrrev_b32 v18, 5, v1")
    a("s_lshl_b32 s46, s40, 1")
    a("v_add_u32 v18, s46, v18")
    a("v_lshl_add_u32 v18, v18, 9, v14")
    a("v_lshlrev_b32 v18, 3, v18")
    a("buffer_store_dwordx2 v[16:17], v18, s[36:39], 0 offen")
    a("s_waitcnt vmcnt(0)")
    a.stamp(3)
    a.stamp_flush(0, 5)
    a("s_endpgm")

    a.label("L_k1_ln")
    a.stamp(0)
    srd_input(a, 8, 'x', 0)
    srd_input(a, 12, 'gw', 0)
    srd_input(a, 16, 'cre', 0)
    srd_input(a, 20, 'cim', 0)
    a("s_waitcnt lgkmcnt(0)")
    srd_finish(a, 8, 2048 * 512 * 2)
    srd_finish(a, 12, 1024)
    srd_finish(a, 16, 512 * 512 * 2)
    srd_finish(a, 20, 512 * 512 * 2)
    srd_ws(a, 24, 4, 'hln')
    srd_ws(a, 28, 4, 'g')
    srd_ws(a, 32, 4, 'cp')
    a("s_sub_u32 s40, s2, 256")
    a("s_lshl_b32 s40, s40, 1")
    a("s_add_u32 s40, s40, s3")
    a("v_lshlrev_b32 v2, 4, v1")
    a("s_lshl_b32 s41, s40, 12")
    for r in range(4):
        a(f"s_add_u32 s42, s41, {r*1024}")
        a(f"buffer_load_dwordx4 v[{4+r*4}:{7+r*4}], v2, s[8:11], s42 offen")
    a("buffer_load_dwordx4 v[20:23], v2, s[12:15], 0 offen")
    a("s_lshl_b32 s43, s40, 10")
    a("buffer_load_dwordx4 v[24:27], v2, s[16:19], s43 offen")
    a("buffer_load_dwordx4 v[28:31], v2, s[20:23], s43 offen")
    a("s_mov_b32 s44, 0x05040100")
    a("s_mov_b32 s45, 0x07060302")
    a("s_waitcnt vmcnt(0)")
    for k in range(4):
        a(f"v_xor_b32 v{28+k}, 0x80008000, v{28+k}")
    for k in range(4):
        a(f"v_perm_b32 v{32+2*k}, v{28+k}, v{24+k}, s44")
        a(f"v_perm_b32 v{33+2*k}, v{28+k}, v{24+k}, s45")
    a("v_lshlrev_b32 v3, 5, v1")
    a("s_lshl_b32 s43, s40, 11")
    a("buffer_store_dwordx4 v[32:35], v3, s[32:35], s43 offen")
    a("buffer_store_dwordx4 v[36:39], v3, s[32:35], s43 offen offset:16")
    for k in range(4):
        a(f"v_lshlrev_b32 v{40+2*k}, 16, v{20+k}")
        a(f"v_and_b32 v{41+2*k}, 0xffff0000, v{20+k}")
    for r in range(4):
        for k in range(4):
            a(f"v_lshlrev_b32 v{48+8*r+2*k}, 16, v{4+4*r+k}")
            a(f"v_and_b32 v{49+8*r+2*k}, 0xffff0000, v{4+4*r+k}")
    for r in range(4):
        X = 48 + 8 * r
        a(f"v_add_f32 v{80+r}, v{X}, v{X+1}")
        for k in range(2, 8):
            a(f"v_add_f32 v{80+r}, v{80+r}, v{X+k}")
        for k in range(4):
            a(f"v_mul_f32 v88, v{X+2*k}, v{40+2*k}")
            a(f"v_mul_f32 v89, v{X+2*k+1}, v{41+2*k}")
            a(f"v_cvt_pk_bf16_f32 v88, v88, v89")
            a(f"v_lshlrev_b32 v89, 16, v88")
            a(f"v_and_b32 v88, 0xffff0000, v88")
            if k == 0:
                a(f"v_add_f32 v{84+r}, v88, v89")
            else:
                a(f"v_add_f32 v{84+r}, v{84+r}, v88")
                a(f"v_add_f32 v{84+r}, v{84+r}, v89")

    def wave_sum(regs):
        for sh in (8, 4, 2, 1):
            a("s_nop 1")
            for v in regs:
                a(f"v_add_f32_dpp v{v}, v{v}, v{v} row_ror:{sh} row_mask:0xf bank_mask:0xf")
        a("s_nop 1")
        for v in regs:
            for q in range(4):
                a(f"v_readlane_b32 s{48+q}, v{v}, {16*q}")
            a("s_nop 1")
            a(f"v_mov_b32 v{v}, s48")
            for q in range(1, 4):
                a(f"v_add_f32 v{v}, s{48+q}, v{v}")

    wave_sum(list(range(80, 88)))
    for r in range(4):
        X = 48 + 8 * r
        a(f"v_mul_f32 v{80+r}, 0x3b000000, v{80+r}")
        for k in range(8):
            a(f"v_sub_f32 v88, v{X+k}, v{80+r}")
            if k == 0:
                a(f"v_mul_f32 v{92+r}, v88, v88")
            else:
                a(f"v_fma_f32 v{92+r}, v88, v88, v{92+r}")
    wave_sum(list(range(92, 96)))
    for r in range(4):
        X = 48 + 8 * r
        a(f"v_mul_f32 v{92+r}, 0x3b000000, v{92+r}")
        bf16r(a, 92 + r, 92 + r)
        a(f"v_add_f32 v{92+r}, 0x3727c5ac, v{92+r}")
        bf16r(a, 92 + r, 92 + r)
        a(f"v_sqrt_f32 v{92+r}, v{92+r}")
        a("s_nop 0")
        bf16r(a, 92 + r, 92 + r)
        a(f"v_rcp_f32 v{92+r}, v{92+r}")
        bf16r(a, 80 + r, 80 + r)
        for k in range(4):
            a(f"v_sub_f32 v88, v{X+2*k}, v{80+r}")
            a(f"v_sub_f32 v89, v{X+2*k+1}, v{80+r}")
            a(f"v_cvt_pk_bf16_f32 v88, v88, v89")
            a(f"v_lshlrev_b32 v89, 16, v88")
            a(f"v_and_b32 v88, 0xffff0000, v88")
            a(f"v_mul_f32 v89, v89, v{92+r}")
            a(f"v_mul_f32 v88, v88, v{92+r}")
            a(f"v_cvt_pk_bf16_f32 v{96+4*r+k}, v89, v88")
        a(f"s_add_u32 s42, s41, {r*1024}")
        a(f"buffer_store_dwordx4 v[{96+4*r}:{99+4*r}], v2, s[24:27], s42 offen")
        bf16r(a, 84 + r, 84 + r)
        a(f"v_mul_f32 v{84+r}, 0xbfb8aa3b, v{84+r}")
        a(f"v_exp_f32 v{84+r}, v{84+r}")
        a("s_nop 0")
        a(f"v_add_f32 v{84+r}, 1.0, v{84+r}")
        a(f"v_rcp_f32 v{84+r}, v{84+r}")
        a("s_nop 0")
        bf16r(a, 84 + r, 84 + r)
    a("v_mov_b32 v88, v84")
    a("v_cmp_eq_u32 vcc, 1, v1")
    a("s_nop 1")
    a("v_cndmask_b32 v88, v88, v85, vcc")
    a("v_cmp_eq_u32 vcc, 2, v1")
    a("s_nop 1")
    a("v_cndmask_b32 v88, v88, v86, vcc")
    a("v_cmp_eq_u32 vcc, 3, v1")
    a("s_nop 1")
    a("v_cndmask_b32 v88, v88, v87, vcc")
    a("v_lshlrev_b32 v89, 2, v1")
    a("s_lshl_b32 s42, s40, 4")
    a("v_cmp_gt_u32 vcc, 4, v1")
    a("s_and_saveexec_b64 s[50:51], vcc")
    a("buffer_store_dword v88, v89, s[28:31], s42 offen")
    a("s_waitcnt vmcnt(0)")
    a.stamp(3)
    a.stamp_flush(0, 5)
    a.label("L_k1_end")
    a("s_endpgm")


def write_partials(a, s_wb):
    a("v_and_b32 v14, 31, v1")
    a("v_mul_u32_u24 v14, 272, v14")
    a("v_lshrrev_b32 v15, 5, v1")
    a("v_lshl_add_u32 v14, v15, 4, v14")
    a(f"v_add_u32 v14, s{s_wb}, v14")
    a("s_nop 15")
    for qm in range(2):
        for qn in range(2):
            for j in range(4):
                acc = 64 + (qm * 2 + qn) * 16 + 4 * j
                off = qn * 32 * 272 + (qm * 32 + 8 * j) * 4
                a(f"ds_write_b128 v14, v[{acc}:{acc+3}] offset:{off}")
    a("s_waitcnt lgkmcnt(0)")
    a("s_barrier")


def k2(a):
    kernel_header(a, "k2_kernel")
    a("s_cmp_ge_u32 s2, 256")
    a("s_cbranch_scc1 L_k2_end")
    a("v_and_b32 v1, 63, v0")
    a("v_lshrrev_b32 v2, 6, v0")
    a("s_load_dwordx2 s[4:5], s[0:1], 136")
    a("s_nop 0")
    a("v_readfirstlane_b32 s3, v2")
    a("s_cmp_ge_u32 s2, 192")
    a("s_cbranch_scc1 L_k2_scan")
    a("s_and_b32 s40, s2, 7")
    a("s_lshr_b32 s41, s2, 6")
    a("s_lshl_b32 s41, s41, 3")
    a("s_add_u32 s40, s40, s41")
    a("s_cmp_ge_u32 s40, 22")
    a("s_cbranch_scc1 L_k2_end")
    a("s_lshr_b32 s41, s2, 3")
    a("s_and_b32 s41, s41, 7")
    srd_input(a, 8, 'w1', 0)
    srd_input(a, 12, 'b1', 0)
    a("s_waitcnt lgkmcnt(0)")
    srd_finish(a, 8, 2048 * 1376 * 2)
    srd_finish(a, 12, 1376 * 2)
    srd_ws(a, 16, 4, 'hln')
    srd_ws(a, 20, 4, 'u')
    a("s_lshl_b32 s42, s3, 15")
    a("s_mul_i32 s43, s3, %d" % (512 * 2752))
    a("s_lshl_b32 s46, s40, 7")
    a("s_add_u32 s43, s43, s46")
    a("s_lshl_b32 s44, s3, 19")
    a("s_lshl_b32 s46, s41, 7")
    a("s_add_u32 s44, s44, s46")
    a("v_and_b32 v20, 3, v0")
    a("v_lshlrev_b32 v20, 5, v20")
    a("s_lshl_b32 s46, s40, 7")
    a("buffer_load_dwordx4 v[24:27], v20, s[12:15], s46 offen")
    a("buffer_load_dwordx4 v[28:31], v20, s[12:15], s46 offen offset:16")
    opA = Op('KM', [8] * 8, 2752, 43, 2, 6)
    opB = Op('KM', [16] * 8, 1024, 44, 4, 10)
    setup_op(a, opA, 42, 0)
    setup_op(a, opB, 42, 1)
    gemm_loop(a, [opA, opB], 8, 42, 45)
    write_partials(a, 42)
    a("v_lshrrev_b32 v14, 2, v0")
    a("v_mul_u32_u24 v15, 272, v14")
    a("v_and_b32 v16, 3, v0")
    a("v_lshl_add_u32 v15, v16, 6, v15")
    a("v_add_u32 v18, 0x10000, v15")
    for w in range(4):
        for i in range(4):
            a(f"ds_read_b128 v[{64+w*16+i*4}:{67+w*16+i*4}], v{15 if w < 2 else 18} offset:{(w&1)*32768+i*16}")
    a("s_waitcnt lgkmcnt(0)")
    for i in range(16):
        a(f"v_add_f32 v{64+i}, v{64+i}, v{80+i}")
        a(f"v_add_f32 v{96+i}, v{96+i}, v{112+i}")
    for i in range(16):
        a(f"v_add_f32 v{64+i}, v{64+i}, v{96+i}")
    for k in range(8):
        a(f"v_cvt_pk_bf16_f32 v80, v{64+2*k}, v{65+2*k}")
        a(f"v_lshlrev_b32 v81, 16, v80")
        a(f"v_and_b32 v80, 0xffff0000, v80")
        a(f"v_lshlrev_b32 v82, 16, v{24+k}")
        a(f"v_and_b32 v83, 0xffff0000, v{24+k}")
        a(f"v_add_f32 v81, v81, v82")
        a(f"v_add_f32 v80, v80, v83")
        a(f"v_cvt_pk_bf16_f32 v80, v81, v80")
        a(f"v_lshlrev_b32 v{64+2*k}, 16, v80")
        a(f"v_and_b32 v{65+2*k}, 0xffff0000, v80")
    c1 = -2 * 0.7978845608028654 * 1.4426950408889634
    c2 = c1 * 0.044715
    import struct
    f2u = lambda f: struct.unpack("<I", struct.pack("<f", f))[0]
    a(f"s_mov_b32 s46, {f2u(c1):#x}")
    a(f"s_mov_b32 s47, {f2u(c2):#x}")
    a(f"v_mov_b32 v100, s46")
    for i in range(16):
        a(f"v_mul_f32 v{80+i}, v{64+i}, v{64+i}")
        a(f"v_fma_f32 v{80+i}, v{80+i}, s47, v100")
        a(f"v_mul_f32 v{80+i}, v{80+i}, v{64+i}")
        a(f"v_exp_f32 v{80+i}, v{80+i}")
    for i in range(16):
        a(f"v_add_f32 v{80+i}, 1.0, v{80+i}")
        a(f"v_rcp_f32 v{80+i}, v{80+i}")
    a("s_nop 0")
    for i in range(16):
        a(f"v_mul_f32 v{64+i}, v{64+i}, v{80+i}")
    for k in range(8):
        a(f"v_cvt_pk_bf16_f32 v{80+k}, v{64+2*k}, v{65+2*k}")
    a("s_lshl_b32 s46, s40, 6")
    a("v_lshl_add_u32 v17, v16, 4, s46")
    a("v_cmp_gt_u32 vcc, 1376, v17")
    a("s_nop 1")
    for k in range(8):
        a(f"v_cndmask_b32 v{80+k}, 0, v{80+k}, vcc")
    a("s_lshl_b32 s46, s41, 6")
    a("v_add_u32 v14, s46, v14")
    a(f"v_mul_u32_u24 v14, {URS}, v14")
    a("v_lshl_add_u32 v14, v17, 1, v14")
    a("buffer_store_dwordx4 v[80:83], v14, s[20:23], 0 offen")
    a("buffer_store_dwordx4 v[84:87], v14, s[20:23], 0 offen offset:16")
    a("s_waitcnt vmcnt(0)")
    a.stamp(3)
    a.stamp_flush(1, 5)
    a("s_endpgm")

    a.label("L_k2_scan")
    a.stamp(0)
    srd_input(a, 20, 'lre', 0)
    srd_input(a, 24, 'lim', 0)
    srd_input(a, 28, 'ldt', 0)
    a("s_waitcnt lgkmcnt(0)")
    srd_finish(a, 20, 1024)
    srd_finish(a, 24, 1024)
    srd_finish(a, 28, 1024)
    srd_ws(a, 32, 4, 'xx')
    srd_ws(a, 36, 4, 'e')
    srd_ws(a, 8, 4, 'h')
    a("s_sub_u32 s40, s2, 192")
    a("s_lshl_b32 s40, s40, 2")
    a("s_add_u32 s40, s40, s3")
    a("s_and_b32 s41, s40, 15")
    a("s_lshr_b32 s40, s40, 4")
    a("v_and_b32 v14, 31, v1")
    a("s_lshl_b32 s46, s41, 5")
    a("v_add_u32 v14, s46, v14")
    a("v_lshlrev_b32 v15, 3, v14")
    for j in range(64):
        a(f"s_mov_b32 s46, {j*4096}")
        a(f"buffer_load_dwordx2 v[{128+2*j}:{129+2*j}], v15, s[36:39], s46 offen")
    lam_consts(a, 14, 20, 24, 28, 20, True)
    a("v_mov_b32 v24, v20")
    a("v_mov_b32 v25, v21")
    for _ in range(5):
        a("v_mul_f32 v26, v25, v25")
        a("v_mul_f32 v27, v24, v25")
        a("v_fma_f32 v24, v24, v24, -v26")
        a("v_add_f32 v25, v27, v27")
    a("v_cmp_lt_u32 s[50:51], 31, v1")
    a("v_lshlrev_b32 v16, 4, v1")
    a("v_lshrrev_b32 v17, 5, v1")
    a("v_lshlrev_b32 v17, 16, v17")
    a("v_lshl_add_u32 v17, v14, 2, v17")
    a("s_mov_b32 s48, 0")
    a.stamp(1)
    a.label("L_k2_it")
    a("s_lshl_b32 s46, s40, 4")
    a("s_add_u32 s46, s46, s41")
    a("s_lshl_b32 s46, s46, 14")
    for qd in range(16):
        a(f"s_add_u32 s47, s46, {qd*1024}")
        a(f"buffer_load_dwordx4 v[{64+qd*4}:{67+qd*4}], v16, s[32:35], s47 offen")
    a("s_lshl_b32 s49, s40, 1")
    a("s_lshl_b32 s46, s49, 12")
    a("buffer_load_dwordx2 v[30:31], v15, s[36:39], s46 offen")
    a("v_mov_b32 v28, 0")
    a("v_mov_b32 v29, 0")
    for j in range(62):
        a(f"s_cmp_le_u32 s49, {j}")
        a("s_cbranch_scc1 L_k2_hd")
        a(f"v_fma_f32 v26, -v25, v29, v{128+2*j}")
        a(f"v_fma_f32 v27, v25, v28, v{129+2*j}")
        a(f"v_fma_f32 v28, v24, v28, v26")
        a(f"v_fma_f32 v29, v24, v29, v27")
    a.label("L_k2_hd")
    a("s_waitcnt vmcnt(0)")
    a(f"v_fma_f32 v26, -v25, v29, v30")
    a(f"v_fma_f32 v27, v25, v28, v31")
    a(f"v_fma_f32 v26, v24, v28, v26")
    a(f"v_fma_f32 v27, v24, v29, v27")
    a("v_cndmask_b32 v28, v28, v26, s[50:51]")
    a("v_cndmask_b32 v29, v29, v27, s[50:51]")
    a("s_lshl_b32 s46, s40, 17")
    for t in range(32):
        qm, i = t >> 4, t & 15
        xr = 64 + (qm * 2 + 0) * 16 + i
        xi = 64 + (qm * 2 + 1) * 16 + i
        pk = 32 + (t & 7)
        a(f"v_fma_f32 v26, -v21, v29, v{xr}")
        a(f"v_fma_f32 v27, v21, v28, v{xi}")
        a(f"v_fma_f32 v28, v20, v28, v26")
        a(f"v_fma_f32 v29, v20, v29, v27")
        a(f"v_mul_f32 v26, v22, v28")
        a(f"v_mul_f32 v27, v22, v29")
        a(f"v_fma_f32 v26, -v23, v29, v26")
        a(f"v_fma_f32 v27, v23, v28, v27")
        a(f"v_cvt_pk_bf16_f32 v{pk}, v26, v27")
        a(f"s_add_u32 s47, s46, {t*2048}")
        a(f"buffer_store_dword v{pk}, v17, s[8:11], s47 offen")
    a("s_sub_u32 s40, 31, s40")
    a("s_add_u32 s48, s48, 1")
    a("s_cmp_lt_u32 s48, 2")
    a("s_cbranch_scc1 L_k2_it")
    a("s_waitcnt vmcnt(0)")
    a.stamp(3)
    a.stamp_flush(1, 5)
    a.label("L_k2_end")
    a("s_endpgm")


def k3(a):
    kernel_header(a, "k3_kernel")
    a("s_cmp_ge_u32 s2, 256")
    a("s_cbranch_scc1 L_k3_end")
    a("v_and_b32 v1, 63, v0")
    a("v_lshrrev_b32 v2, 6, v0")
    a("s_load_dwordx2 s[4:5], s[0:1], 136")
    srd_input(a, 8, 'w2', 0)
    srd_input(a, 24, 'x', 0)
    srd_input(a, 28, 'dsk', 0)
    srd_input(a, 32, 'b2', 0)
    srd_input(a, 52, 'out', 0)
    a("v_readfirstlane_b32 s3, v2")
    a("s_waitcnt lgkmcnt(0)")
    srd_finish(a, 8, 1376 * 2048 * 2)
    srd_finish(a, 24, 2048 * 512 * 2)
    srd_finish(a, 28, 1024)
    srd_finish(a, 32, 4096)
    srd_finish(a, 52, 2048 * 512 * 4)
    srd_ws(a, 12, 4, 'u')
    srd_ws(a, 16, 4, 'cp')
    srd_ws(a, 20, 4, 'h')
    srd_ws(a, 36, 4, 'g')
    a("s_and_b32 s40, s2, 7")
    a("s_lshl_b32 s40, s40, 2")
    a("s_lshr_b32 s41, s2, 6")
    a("s_add_u32 s40, s40, s41")
    a("s_lshr_b32 s41, s2, 3")
    a("s_and_b32 s41, s41, 7")
    a("s_lshl_b32 s42, s3, 15")
    a("v_lshrrev_b32 v20, 2, v0")
    a("s_lshl_b32 s46, s40, 6")
    a("v_add_u32 v20, s46, v20")
    a("v_and_b32 v21, 3, v0")
    a("v_lshlrev_b32 v21, 4, v21")
    a("s_lshl_b32 s46, s41, 6")
    a("v_add_u32 v21, s46, v21")
    a("v_lshl_add_u32 v22, v20, 9, v21")
    a("v_lshlrev_b32 v23, 1, v22")
    a("buffer_load_dwordx4 v[128:131], v23, s[24:27], 0 offen")
    a("buffer_load_dwordx4 v[132:135], v23, s[24:27], 0 offen offset:16")
    a("v_lshlrev_b32 v23, 1, v21")
    a("buffer_load_dwordx4 v[136:139], v23, s[28:31], 0 offen")
    a("buffer_load_dwordx4 v[140:143], v23, s[28:31], 0 offen offset:16")
    a("v_lshlrev_b32 v23, 1, v20")
    a("buffer_load_ushort v144, v23, s[32:35], 0 offen")
    a("v_lshlrev_b32 v23, 2, v20")
    a("buffer_load_dword v145, v23, s[36:39], 0 offen")
    a("s_cmp_ge_u32 s3, 2")
    a("s_cbranch_scc1 L_k3_ssm")
    a(f"s_mul_i32 s43, s41, {64*URS}")
    a(f"s_mul_i32 s46, s3, {11*128}")
    a("s_add_u32 s43, s43, s46")
    a(f"s_mul_i32 s44, s3, {11*64*4096}")
    a("s_lshl_b32 s46, s40, 7")
    a("s_add_u32 s44, s44, s46")
    opA = Op('KC', [12] * 8, URS, 43, 2, 6)
    opB = Op('KM', [8] * 8, 4096, 44, 4, 10)
    setup_op(a, opA, 42, 0)
    setup_op(a, opB, 42, 1)
    gemm_loop(a, [opA, opB], 11, 42, 45)
    a("s_branch L_k3_red")
    a.label("L_k3_ssm")
    a("s_sub_u32 s47, s3, 2")
    a("s_lshl_b32 s47, s47, 10")
    a("s_lshl_b32 s43, s41, 17")
    a("s_add_u32 s43, s43, s47")
    a("s_lshl_b32 s44, s40, 17")
    a("s_add_u32 s44, s44, s47")
    opA = Op('KC', [16] * 8, 2048, 43, 2, 6)
    opB = Op('KC', [20] * 8, 2048, 44, 4, 10)
    setup_op(a, opA, 42, 0)
    setup_op(a, opB, 42, 1)
    gemm_loop(a, [opA, opB], 8, 42, 45)
    a.label("L_k3_red")
    write_partials(a, 42)
    a("v_lshrrev_b32 v14, 2, v0")
    a("v_mul_u32_u24 v15, 272, v14")
    a("v_and_b32 v16, 3, v0")
    a("v_lshl_add_u32 v15, v16, 6, v15")
    a("v_add_u32 v18, 0x10000, v15")
    for w in range(4):
        for i in range(4):
            a(f"ds_read_b128 v[{64+w*16+i*4}:{67+w*16+i*4}], v{15 if w < 2 else 18} offset:{(w&1)*32768+i*16}")
    a("s_waitcnt lgkmcnt(0)")
    for i in range(16):
        a(f"v_add_f32 v{64+i}, v{64+i}, v{80+i}")
        a(f"v_add_f32 v{96+i}, v{96+i}, v{112+i}")
    a("v_lshlrev_b32 v144, 16, v144")
    a("v_sub_f32 v146, 1.0, v145")
    bf16r(a, 146, 146)
    for k in range(8):
        a(f"v_cvt_pk_bf16_f32 v80, v{64+2*k}, v{65+2*k}")
        a(f"v_lshlrev_b32 v81, 16, v80")
        a(f"v_and_b32 v80, 0xffff0000, v80")
        a(f"v_add_f32 v81, v81, v144")
        a(f"v_add_f32 v80, v80, v144")
        a(f"v_cvt_pk_bf16_f32 v80, v81, v80")
        a(f"v_lshlrev_b32 v81, 16, v80")
        a(f"v_and_b32 v80, 0xffff0000, v80")
        a(f"v_mul_f32 v81, v81, v146")
        a(f"v_mul_f32 v80, v80, v146")
        a(f"v_cvt_pk_bf16_f32 v80, v81, v80")
        a(f"v_lshlrev_b32 v{64+2*k}, 16, v80")
        a(f"v_and_b32 v{65+2*k}, 0xffff0000, v80")
        a(f"v_lshlrev_b32 v81, 16, v{128+k}")
        a(f"v_and_b32 v80, 0xffff0000, v{128+k}")
        a(f"v_lshlrev_b32 v82, 16, v{136+k}")
        a(f"v_and_b32 v83, 0xffff0000, v{136+k}")
        a(f"v_mul_f32 v81, v81, v82")
        a(f"v_mul_f32 v80, v80, v83")
        a(f"v_cvt_pk_bf16_f32 v80, v81, v80")
        a(f"v_lshlrev_b32 v81, 16, v80")
        a(f"v_and_b32 v80, 0xffff0000, v80")
        a(f"v_fma_f32 v81, 2.0, v{96+2*k}, v81")
        a(f"v_fma_f32 v80, 2.0, v{97+2*k}, v80")
        a(f"v_mul_f32 v81, v81, v145")
        a(f"v_mul_f32 v80, v80, v145")
        a(f"v_add_f32 v{64+2*k}, v{64+2*k}, v81")
        a(f"v_add_f32 v{65+2*k}, v{65+2*k}, v80")
    a("v_lshlrev_b32 v23, 2, v22")
    for i in range(4):
        a(f"buffer_store_dwordx4 v[{64+4*i}:{67+4*i}], v23, s[52:55], 0 offen offset:{16*i}")
    a("s_waitcnt vmcnt(0)")
    a.stamp(3)
    a.stamp_flush(2, 5)
    a.label("L_k3_end")
    a("s_endpgm")


def main():
    ref = open(f"cdna_kernels/{NAME}.s.ref").read().split("\n")
    head = [l for l in ref if l.startswith(";") and "@launch" not in l and "Override" not in l and "grid=ceil" not in l]
    out = head + [
        "; @launch kernel=k1_kernel grid=(512,1,1) block=(128,1,1) lds=65536",
        "; @launch kernel=k2_kernel grid=(256,1,1) block=(256,1,1) lds=131072",
        "; @launch kernel=k3_kernel grid=(256,1,1) block=(256,1,1) lds=131072",
        '.amdgcn_target "amdgcn-amd-amdhsa--gfx950"',
        ".text",
    ]
    a = Asm()
    k1(a)
    k2(a)
    k3(a)
    out += a.lines
    out.append('.section .rodata,"a"')
    out.append(kd("k1_kernel", 224))
    out.append(kd("k2_kernel", 256))
    out.append(kd("k3_kernel", 224))
    path = sys.argv[1] if len(sys.argv) > 1 else f"cdna_kernels/{NAME}.s"
    open(path, "w").write("\n".join(out) + "\n")


main()
```

```python
import os
import struct
import sys

NAME = "gated_mix__ssm_conv_s5__mixer_token_mlp__prompt"
STAMPS = os.environ.get("STAMPS") == "1"
SLEEP = int(os.environ.get("SLEEP", "4"))
SSM_FIRST = os.environ.get("MIXFIRST") != "1"

KP = dict(x=64, lre=66, lim=68, bre=70, bim=72, cre=74, cim=76, ldt=78, dsk=80,
          w1=84, b1=86, w2=88, b2=90, gw=92, out=94, dbg=96, ws=98)
SZ = dict(x=2048 * 512 * 2, lre=1024, lim=1024, bre=512 * 512 * 2, bim=512 * 512 * 2,
          cre=512 * 512 * 2, cim=512 * 512 * 2, ldt=1024, dsk=1024, w1=2048 * 1376 * 2,
          b1=1376 * 2, w2=1376 * 2048 * 2, b2=4096, gw=1024, out=2048 * 512 * 4, dbg=256)
WS = dict(
    hln=(0x0000000, 2048 * 512 * 2),
    g=(0x0200000, 768 * 128),
    e=(0x0300000, 16 * 512 * 8),
    u=(0x0400000, 512 * 1408 * 2),
    h=(0x0800000, 2048 * 1024 * 2),
)
URS = 1408 * 2
WREG = 40960
SLOT = 8192
NSLOT = 5
PSTR = 17408
LNR = 3

S0, S1, S2, S3, S4, S5, S6, S7 = 8, 12, 16, 20, 24, 28, 32, 36
SDBG = 4
sXCD, sR, sWB = 40, 41, 42
sT0, sT1, sT2, sT3, sT4 = 43, 44, 45, 46, 47
sST, sDT, sFLG, sA, sB, sC0, sC1, sT, sCNT = 52, 53, 54, 55, 56, 57, 58, 59, 60
sC2, sC3 = 61, 62

f2u = lambda f: struct.unpack("<I", struct.pack("<f", f))[0]


class Asm:
    def __init__(self):
        self.lines = []
        self.uid = 0
        self.vmq = []

    def __call__(self, s):
        self.lines.append("    " + s)

    def label(self, l):
        self.lines.append(l + ":")

    def newlabel(self, p):
        self.uid += 1
        return f"L_{p}_{self.uid}"

    def raw(self, s):
        self.lines.append(s)

    def vm(self, s, tag=None):
        self(s)
        self.vmq.append(tag)

    def vwait(self, tag):
        idx = max(i for i, t in enumerate(self.vmq) if t == tag)
        n = len(self.vmq) - 1 - idx
        assert n <= 63, n
        self(f"s_waitcnt vmcnt({n})")
        self.vmq = self.vmq[idx + 1:]

    def vwait0(self):
        self("s_waitcnt vmcnt(0)")
        self.vmq = []

    def stamp(self, idx):
        if STAMPS:
            self("s_memrealtime s[100:101]")
            self("s_waitcnt lgkmcnt(0)")
            self(f"v_writelane_b32 v31, s100, {idx}")

    def cstamp(self, idx):
        if STAMPS:
            self("s_memtime s[100:101]")
            self("s_waitcnt lgkmcnt(0)")
            self(f"v_writelane_b32 v31, s100, {idx}")

    def stamp_flush(self):
        if not STAMPS:
            return
        self.cstamp(63)
        self(f"s_add_u32 s{S0}, s{KP['ws']}, 0x2000000")
        self(f"s_addc_u32 s{S0+1}, s{KP['ws']+1}, 0")
        self(f"s_and_b32 s{S0+1}, s{S0+1}, 0xffff")
        self(f"s_mov_b32 s{S0+2}, 0x100000")
        self(f"s_mov_b32 s{S0+3}, 0x00020000")
        self(f"s_lshl_b32 s{sT0}, s2, 2")
        self(f"s_add_u32 s{sT0}, s{sT0}, s3")
        self(f"s_lshl_b32 s{sT0}, s{sT0}, 8")
        self("v_lshlrev_b32 v2, 2, v1")
        self(f"buffer_store_dword v31, v2, s[{S0}:{S0+3}], s{sT0} offen")


def srd(a, slot, key):
    p = KP[key]
    a(f"s_mov_b32 s{slot}, s{p}")
    a(f"s_and_b32 s{slot+1}, s{p+1}, 0xffff")
    a(f"s_mov_b32 s{slot+2}, {SZ[key]}")
    a(f"s_mov_b32 s{slot+3}, 0x00020000")


def srdws(a, slot, key):
    off, size = WS[key]
    p = KP['ws']
    a(f"s_add_u32 s{slot}, s{p}, {off}")
    a(f"s_addc_u32 s{slot+1}, s{p+1}, 0")
    a(f"s_and_b32 s{slot+1}, s{slot+1}, 0xffff")
    a(f"s_mov_b32 s{slot+2}, {size}")
    a(f"s_mov_b32 s{slot+3}, 0x00020000")


class Op:
    def __init__(self, kind, srds, rs, scur, vdma, vfrag, perm=False):
        self.kind = kind
        self.srds = srds
        self.rs = rs
        self.scur = scur
        self.vdma = vdma
        self.vfrag = vfrag
        self.perm = perm
        self.rowoff = [i * 8 * rs for i in range(8)]
        self.adv = 128 if kind == 'KC' else 64 * rs


def setup_dma(a, op):
    rs = op.rs
    a(f"v_lshrrev_b32 v14, 3, v1")
    a(f"v_mul_u32_u24 v14, {rs}, v14")
    a(f"v_and_b32 v15, 7, v1")
    if op.kind == 'KC':
        a(f"v_lshrrev_b32 v16, 4, v1")
        a(f"v_xor_b32 v15, v15, v16")
        a(f"v_lshlrev_b32 v15, 4, v15")
        a(f"v_add_u32 v{op.vdma}, v14, v15")
        a(f"v_xor_b32 v15, 64, v15")
        a(f"v_add_u32 v{op.vdma+1}, v14, v15")
    else:
        a(f"v_lshrrev_b32 v16, 2, v1")
        a(f"v_and_b32 v16, 4, v16")
        a(f"v_xor_b32 v15, v15, v16")
        a(f"v_lshl_add_u32 v{op.vdma}, v15, 4, v14")


def setup_frag(a, op, sbase):
    if op.kind == 'KC':
        a(f"v_and_b32 v14, 31, v1")
        if op.perm:
            a(f"v_lshrrev_b32 v15, 2, v14")
            a(f"v_and_b32 v15, 1, v15")
            a(f"v_lshlrev_b32 v15, 5, v15")
            a(f"v_lshrrev_b32 v16, 3, v14")
            a(f"v_lshl_add_u32 v15, v16, 2, v15")
            a(f"v_and_b32 v14, 3, v14")
            a(f"v_add_u32 v14, v14, v15")
        a(f"v_lshrrev_b32 v15, 1, v14")
        a(f"v_and_b32 v15, 7, v15")
        a(f"v_lshrrev_b32 v16, 5, v1")
        a(f"v_xor_b32 v15, v15, v16")
        a(f"v_lshlrev_b32 v15, 4, v15")
        a(f"v_lshl_add_u32 v14, v14, 7, v15")
        if sbase is None:
            a(f"v_mov_b32 v{op.vfrag}, v14")
        else:
            a(f"v_add_u32 v{op.vfrag}, s{sbase}, v14")
        for j in range(1, 4):
            a(f"v_xor_b32 v{op.vfrag+j}, {j<<5}, v{op.vfrag}")
    else:
        a(f"v_lshrrev_b32 v14, 5, v1")
        a(f"v_lshlrev_b32 v14, 3, v14")
        a(f"v_lshrrev_b32 v15, 2, v1")
        a(f"v_and_b32 v15, 3, v15")
        a(f"v_add_u32 v14, v14, v15")
        a(f"v_lshlrev_b32 v14, 7, v14")
        a(f"v_lshrrev_b32 v16, 4, v1")
        a(f"v_and_b32 v16, 1, v16")
        a(f"v_lshlrev_b32 v16, 1, v16")
        a(f"v_lshrrev_b32 v17, 1, v1")
        a(f"v_and_b32 v17, 1, v17")
        a(f"v_add_u32 v16, v16, v17")
        a(f"v_lshrrev_b32 v15, 1, v15")
        a(f"v_lshlrev_b32 v15, 2, v15")
        a(f"v_xor_b32 v16, v16, v15")
        a(f"v_lshl_add_u32 v14, v16, 4, v14")
        a(f"v_and_b32 v17, 1, v1")
        a(f"v_lshl_add_u32 v14, v17, 3, v14")
        a(f"v_add_u32 v{op.vfrag}, s{sbase}, v14")
        a(f"v_xor_b32 v{op.vfrag+1}, 64, v{op.vfrag}")


def dma_groups(op, st, ldsoff, sbase, tag, rng=range(8), m=0):
    out = []
    for i in rng:
        v = op.vdma + ((i & 1) if op.kind == 'KC' else 0)
        out.append(([f"s_add_u32 m0, s{sbase}, {ldsoff + i * 1024}",
                     f"s_add_u32 s{sT}, s{op.scur}, {op.rowoff[i] + st * op.adv}"],
                    f"buffer_load_dwordx4 v{v}, s[{op.srds[i]}:{op.srds[i]+3}], s{sT} offen lds", tag))
    return out


def emit_groups(a, grps):
    for pre, ld, tag in grps:
        for l in pre:
            a(l)
        a.vm(ld, tag)


def reads(a, op, ldsoff, j, dst, rf='v'):
    n = 0
    for q in range(2):
        d = dst + q * 4
        if op.kind == 'KC':
            off = ldsoff + q * (2048 if op.perm else 4096)
            a(f"ds_read_b128 {rf}[{d}:{d+3}], v{op.vfrag+j} offset:{off}")
            n += 1
        else:
            off = ldsoff + j * 2048
            a(f"ds_read_b64_tr_b16 {rf}[{d}:{d+1}], v{op.vfrag+q} offset:{off}")
            a(f"ds_read_b64_tr_b16 {rf}[{d+2}:{d+3}], v{op.vfrag+q} offset:{off+512}")
            n += 2
    return n


def preload(a, items, issued, name, sbase=None):
    for i in range(issued, min(NSLOT, len(items))):
        op, st, rf, dst = items[i]
        emit_groups(a, dma_groups(op, st, (i % NSLOT) * SLOT, sWB, f"{name}{i}"))
    for i, (op, st, rf, dst) in enumerate(items):
        a.vwait(f"{name}{i}")
        if sbase is not None:
            a.stamp(sbase + i)
        for j in range(4):
            reads(a, op, (i % NSLOT) * SLOT, j, dst + j * 8, rf)
        k = i + NSLOT
        if k < len(items):
            a("s_waitcnt lgkmcnt(0)")
            op2, st2, _, _ = items[k]
            emit_groups(a, dma_groups(op2, st2, (k % NSLOT) * SLOT, sWB, f"{name}{k}"))
    a("s_waitcnt lgkmcnt(0)")


FX, FY = 32, 48


def stream_gemm(a, sop, stages, slots, mf, name, pre_issued, sbase=None):
    n = len(stages)
    nr = 4 if sop.kind == 'KC' else 8
    nxt = pre_issued

    def R(i, half):
        for jj in range(2):
            j = half * 2 + jj
            reads(a, sop, slots[i] * SLOT, j, (FX if half == 0 else FY) + jj * 8)

    a.vwait(f"{name}0")
    if sbase is not None:
        a.stamp(sbase)
    R(0, 0)
    for i in range(n):
        R(i, 1)
        a(f"s_waitcnt lgkmcnt({nr})")
        for jj in range(2):
            for l in mf(stages[i], jj, FX + jj * 8):
                a(l)
        if i + 1 < n:
            a.vwait(f"{name}{i+1}")
            if sbase is not None:
                a.stamp(sbase + i + 1)
            R(i + 1, 0)
            a(f"s_waitcnt lgkmcnt({nr})")
        else:
            a("s_waitcnt lgkmcnt(0)")
        grps = []
        if nxt < n and slots[nxt] == slots[i]:
            grps = dma_groups(sop, stages[nxt], slots[nxt] * SLOT, sWB, f"{name}{nxt}")
            nxt += 1
        k = 0
        for jj in range(2):
            for l in mf(stages[i], 2 + jj, FY + jj * 8):
                if k < len(grps):
                    emit_groups(a, [grps[k]])
                k += 1
                a(l)
    assert nxt == n


def bf16r(a, dst, src):
    a(f"v_cvt_pk_bf16_f32 v{dst}, v{src}, v{src}")
    a(f"v_lshlrev_b32 v{dst}, 16, v{dst}")


def set_flag(a, val, tag=None):
    if tag is None:
        a.vwait0()
    else:
        a.vwait(tag)
    a("s_barrier")
    l = a.newlabel("nf")
    a("s_cmp_lg_u32 s3, 0")
    a(f"s_cbranch_scc1 {l}")
    a("s_mov_b64 exec, 1")
    a(f"v_mov_b32 v14, s{sFLG}")
    a(f"v_mov_b32 v15, {val}")
    a(f"buffer_store_byte v15, v14, s[{SDBG}:{SDBG+3}], 0 offen sc1")
    a("s_mov_b64 exec, -1")
    a.label(l)


def touch(a, op, stages, two=False):
    a(f"v_mul_u32_u24 v18, {op.rs}, v1")
    for st in stages:
        a(f"s_add_u32 s{sT}, s{op.scur}, {st * op.adv}")
        a.vm(f"buffer_load_dword v5, v18, s[{op.srds[0]}:{op.srds[0]+3}], s{sT} offen")
        if two:
            a.vm(f"buffer_load_dword v5, v18, s[{op.srds[0]}:{op.srds[0]+3}], s{sT} offen offset:124")


def wait_flags(a, dword, mask):
    l = a.newlabel("poll")
    d = a.newlabel("polld")
    a("s_cmp_lg_u32 s3, 0")
    a(f"s_cbranch_scc1 {d}")
    a(f"s_mov_b32 s{sCNT}, 20000")
    a.label(l)
    a(f"buffer_load_{'dword' if dword else 'ubyte'} v15, v14, s[{SDBG}:{SDBG+3}], 0 offen sc1")
    a("s_waitcnt vmcnt(0)")
    a(f"v_and_b32 v15, {mask:#x}, v15")
    a(f"v_cmp_ne_u32 vcc, {mask:#x}, v15")
    a(f"s_cbranch_vccz {d}")
    a(f"s_sleep {SLEEP}")
    a(f"s_sub_u32 s{sCNT}, s{sCNT}, 1")
    a(f"s_cmp_lg_u32 s{sCNT}, 0")
    a(f"s_cbranch_scc1 {l}")
    a.label(d)
    a("s_mov_b64 exec, -1")
    a("s_barrier")


def c_share_touch(a):
    a(f"s_and_b32 s{sT0}, s{sR}, 7")
    a(f"s_lshl_b32 s{sT0}, s{sT0}, 1")
    a(f"s_and_b32 s{sT1}, s3, 1")
    a(f"s_add_u32 s{sT0}, s{sT0}, s{sT1}")
    a(f"s_lshl_b32 s{sT0}, s{sT0}, 12")
    a(f"s_lshl_b32 s{sT1}, s{sDT}, 16")
    a(f"s_add_u32 s{sT0}, s{sT0}, s{sT1}")
    a("v_and_b32 v18, 31, v1")
    a("v_lshlrev_b32 v18, 7, v18")
    a.vm(f"buffer_load_dword v5, v18, s[{S5}:{S5+3}], s{sT0} offen")


def w2_share_touch(a):
    a(f"s_lshr_b32 s{sT0}, s{sR}, 3")
    a(f"s_mul_i32 s{sT0}, s{sT0}, 460")
    a(f"s_mul_i32 s{sT1}, s3, 115")
    a(f"s_add_u32 s{sT0}, s{sT0}, s{sT1}")
    a(f"s_lshl_b32 s{sT0}, s{sT0}, 12")
    a(f"s_lshl_b32 s{sT1}, s{sST}, 7")
    a(f"s_add_u32 s{sT0}, s{sT0}, s{sT1}")
    a(f"s_add_u32 s{sT1}, s{sT0}, {64*4096}")
    a("v_lshlrev_b32 v18, 12, v1")
    a.vm(f"buffer_load_dword v5, v18, s[{S6}:{S6+3}], s{sT0} offen")
    a.vm(f"buffer_load_dword v5, v18, s[{S6}:{S6+3}], s{sT1} offen")


def bu_share_touch(a):
    a(f"s_cmp_ge_u32 s{sR}, 24")
    a(f"s_cselect_b32 s{S7}, s{KP['bim']}, s{KP['bre']}")
    a(f"s_cselect_b32 s{S7+1}, s{KP['bim']+1}, s{KP['bre']+1}")
    a(f"s_and_b32 s48, s{sXCD}, 1")
    a(f"s_lshl_b32 s48, s48, 18")
    a(f"s_and_b32 s49, s{sR}, 7")
    a(f"s_mov_b32 s{S7+2}, {SZ['bre']}")
    a(f"s_lshr_b32 s50, s{sXCD}, 1")
    a(f"s_lshl_b32 s50, s50, 19")
    a(f"s_cmp_lt_u32 s{sR}, 16")
    a(f"s_cselect_b32 s{S7}, s{KP['x']}, s{S7}")
    a(f"s_cselect_b32 s{S7+1}, s{KP['x']+1}, s{S7+1}")
    a(f"s_cselect_b32 s{S7+2}, {SZ['x']}, s{S7+2}")
    a(f"s_cselect_b32 s48, s50, s48")
    a(f"s_cselect_b32 s49, s{sR}, s49")
    a(f"s_and_b32 s{S7+1}, s{S7+1}, 0xffff")
    a(f"s_mov_b32 s{S7+3}, 0x00020000")
    a(f"s_lshl_b32 s49, s49, 2")
    a(f"s_add_u32 s49, s49, s3")
    a(f"s_lshl_b32 s49, s49, 13")
    a(f"s_add_u32 s48, s48, s49")
    a("v_lshlrev_b32 v18, 7, v1")
    a.vm(f"buffer_load_dword v5, v18, s[{S7}:{S7+3}], s48 offen")


def cmul_add(a, dr, di, ar, ai, br, bi, cr, ci, t0, t1):
    a(f"v_fma_f32 v{t0}, -v{ai}, v{bi}, v{cr}")
    a(f"v_fma_f32 v{t1}, v{ai}, v{br}, v{ci}")
    a(f"v_fma_f32 v{dr}, v{ar}, v{br}, v{t0}")
    a(f"v_fma_f32 v{di}, v{ar}, v{bi}, v{t1}")


def csq(a, r, i, t0, t1):
    a(f"v_mul_f32 v{t0}, v{i}, v{i}")
    a(f"v_mul_f32 v{t1}, v{r}, v{i}")
    a(f"v_fma_f32 v{r}, v{r}, v{r}, -v{t0}")
    a(f"v_add_f32 v{i}, v{t1}, v{t1}")


def lam_compute(a, raw, base, t):
    lr, li, cr, ci = base, base + 1, base + 2, base + 3
    Lr, Li, dt = raw, raw + 1, raw + 2
    a(f"v_lshlrev_b32 v{Lr}, 16, v{Lr}")
    a(f"v_lshlrev_b32 v{Li}, 16, v{Li}")
    a(f"v_lshlrev_b32 v{dt}, 16, v{dt}")
    a(f"v_mul_f32 v{dt}, 0x3fb8aa3b, v{dt}")
    a(f"v_exp_f32 v{dt}, v{dt}")
    a("s_nop 0")
    bf16r(a, dt, dt)
    a(f"v_mul_f32 v{t}, v{dt}, v{Lr}")
    a(f"v_mul_f32 v{t+1}, v{dt}, v{Li}")
    a(f"v_mul_f32 v{t}, 0x3fb8aa3b, v{t}")
    a(f"v_exp_f32 v{t}, v{t}")
    a(f"v_mul_f32 v{t+1}, 0.15915494, v{t+1}")
    a(f"v_fract_f32 v{t+1}, v{t+1}")
    a(f"v_cos_f32 v{t+2}, v{t+1}")
    a(f"v_sin_f32 v{t+3}, v{t+1}")
    a("s_nop 0")
    a(f"v_mul_f32 v{lr}, v{t}, v{t+2}")
    a(f"v_mul_f32 v{li}, v{t}, v{t+3}")
    a(f"v_add_f32 v{t}, -1.0, v{lr}")
    a(f"v_mul_f32 v{t+1}, v{Lr}, v{Lr}")
    a(f"v_fma_f32 v{t+1}, v{Li}, v{Li}, v{t+1}")
    a(f"v_rcp_f32 v{t+1}, v{t+1}")
    a(f"v_mul_f32 v{t+2}, v{t}, v{Lr}")
    a(f"v_fma_f32 v{t+2}, v{li}, v{Li}, v{t+2}")
    a(f"v_mul_f32 v{t+3}, v{li}, v{Lr}")
    a(f"v_fma_f32 v{t+3}, -v{t}, v{Li}, v{t+3}")
    a(f"v_mul_f32 v{cr}, v{t+2}, v{t+1}")
    a(f"v_mul_f32 v{ci}, v{t+3}, v{t+1}")


def write_partial(a, rf, accbase, ldsoff, first):
    if first:
        a("v_and_b32 v14, 31, v1")
        a("v_mul_u32_u24 v14, 272, v14")
        a("v_lshrrev_b32 v15, 5, v1")
        a("v_lshl_add_u32 v14, v15, 4, v14")
        a(f"v_add_u32 v14, s{sWB}, v14")
        a("s_nop 15")
    for qm in range(2):
        for qn in range(2):
            for j in range(4):
                acc = accbase + (qm * 2 + qn) * 16 + 4 * j
                off = ldsoff + qn * 32 * 272 + (qm * 32 + 8 * j) * 4
                a(f"ds_write_b128 v14, {rf}[{acc}:{acc+3}] offset:{off}")


def read_partials(a, parts):
    a("v_lshrrev_b32 v14, 2, v0")
    a("v_mul_u32_u24 v15, 272, v14")
    a("v_and_b32 v16, 3, v0")
    a("v_lshl_add_u32 v15, v16, 6, v15")
    a(f"v_add_u32 v18, {2*WREG}, v15")
    for off, dst in parts:
        for w in range(4):
            for i in range(4):
                d = dst + w * 16 + i * 4
                a(f"ds_read_b128 v[{d}:{d+3}], v{15 if w < 2 else 18} offset:{(w&1)*WREG+off+i*16}")


def ln_compute(a):
    R = LNR
    XR, GW, GU, XU = 32, 44, 48, 56
    for k in range(4):
        a(f"v_lshlrev_b32 v{GU+2*k}, 16, v{GW+k}")
        a(f"v_and_b32 v{GU+1+2*k}, 0xffff0000, v{GW+k}")
    for r in range(R):
        for k in range(4):
            a(f"v_lshlrev_b32 v{XU+8*r+2*k}, 16, v{XR+4*r+k}")
            a(f"v_and_b32 v{XU+1+8*r+2*k}, 0xffff0000, v{XR+4*r+k}")
    for r in range(R):
        X = XU + 8 * r
        a(f"v_add_f32 v{80+r}, v{X}, v{X+1}")
        for k in range(2, 8):
            a(f"v_add_f32 v{80+r}, v{80+r}, v{X+k}")
        for k in range(4):
            a(f"v_mul_f32 v88, v{X+2*k}, v{GU+2*k}")
            a(f"v_mul_f32 v89, v{X+2*k+1}, v{GU+1+2*k}")
            a(f"v_cvt_pk_bf16_f32 v88, v88, v89")
            a(f"v_lshlrev_b32 v89, 16, v88")
            a(f"v_and_b32 v88, 0xffff0000, v88")
            if k == 0:
                a(f"v_add_f32 v{84+r}, v88, v89")
            else:
                a(f"v_add_f32 v{84+r}, v{84+r}, v88")
                a(f"v_add_f32 v{84+r}, v{84+r}, v89")

    def wave_sum(regs):
        for sh in (8, 4, 2, 1):
            a("s_nop 1")
            for v in regs:
                a(f"v_add_f32_dpp v{v}, v{v}, v{v} row_ror:{sh} row_mask:0xf bank_mask:0xf")
        a("s_nop 1")
        for v in regs:
            for q in range(4):
                a(f"v_readlane_b32 s{48+q}, v{v}, {16*q}")
            a("s_nop 1")
            a(f"v_mov_b32 v{v}, s48")
            for q in range(1, 4):
                a(f"v_add_f32 v{v}, s{48+q}, v{v}")

    wave_sum([80 + r for r in range(R)] + [84 + r for r in range(R)])
    for r in range(R):
        X = XU + 8 * r
        a(f"v_mul_f32 v{80+r}, 0x3b000000, v{80+r}")
        for k in range(8):
            a(f"v_sub_f32 v88, v{X+k}, v{80+r}")
            if k == 0:
                a(f"v_mul_f32 v{92+r}, v88, v88")
            else:
                a(f"v_fma_f32 v{92+r}, v88, v88, v{92+r}")
    wave_sum([92 + r for r in range(R)])
    for r in range(R):
        X = XU + 8 * r
        a(f"v_mul_f32 v{92+r}, 0x3b000000, v{92+r}")
        bf16r(a, 92 + r, 92 + r)
        a(f"v_add_f32 v{92+r}, 0x3727c5ac, v{92+r}")
        bf16r(a, 92 + r, 92 + r)
        a(f"v_sqrt_f32 v{92+r}, v{92+r}")
        a("s_nop 0")
        bf16r(a, 92 + r, 92 + r)
        a(f"v_rcp_f32 v{92+r}, v{92+r}")
        bf16r(a, 80 + r, 80 + r)
        for k in range(4):
            a(f"v_sub_f32 v88, v{X+2*k}, v{80+r}")
            a(f"v_sub_f32 v89, v{X+2*k+1}, v{80+r}")
            a(f"v_cvt_pk_bf16_f32 v88, v88, v89")
            a(f"v_lshlrev_b32 v89, 16, v88")
            a(f"v_and_b32 v88, 0xffff0000, v88")
            a(f"v_mul_f32 v89, v89, v{92+r}")
            a(f"v_mul_f32 v88, v88, v{92+r}")
            a(f"v_cvt_pk_bf16_f32 v{96+4*r+k}, v89, v88")
        a(f"s_add_u32 s{sT1}, s{sT0}, {r*1024}")
        a.vm(f"buffer_store_dwordx4 v[{96+4*r}:{99+4*r}], v30, s[{S2}:{S2+3}], s{sT1} offen sc1")
        bf16r(a, 84 + r, 84 + r)
        a(f"v_mul_f32 v{84+r}, 0xbfb8aa3b, v{84+r}")
        a(f"v_exp_f32 v{84+r}, v{84+r}")
        a("s_nop 0")
        a(f"v_add_f32 v{84+r}, 1.0, v{84+r}")
        a(f"v_rcp_f32 v{84+r}, v{84+r}")
        a("s_nop 0")
        bf16r(a, 84 + r, 84 + r)
    a("v_mov_b32 v88, v84")
    for r in range(1, R):
        a(f"v_cmp_eq_u32 vcc, {r}, v1")
        a("s_nop 1")
        a(f"v_cndmask_b32 v88, v88, v{84+r}, vcc")
    a("v_lshlrev_b32 v89, 2, v1")
    a(f"s_lshl_b32 s{sT1}, s{sT2}, 7")
    a(f"s_mov_b64 exec, {(1 << R) - 1}")
    a.vm(f"buffer_store_dword v88, v89, s[{S3}:{S3+3}], s{sT1} offen sc1")
    a("s_mov_b64 exec, -1")


def make_c_op(a):
    a("s_cmp_ge_u32 s3, 2")
    a(f"s_cselect_b32 s{S5}, s{KP['cim']}, s{KP['cre']}")
    a(f"s_cselect_b32 s{S5+1}, s{KP['cim']+1}, s{KP['cre']+1}")
    a(f"s_and_b32 s{S5+1}, s{S5+1}, 0xffff")
    a(f"s_mov_b32 s{S5+2}, {SZ['cre']}")
    a(f"s_mov_b32 s{S5+3}, 0x00020000")
    a(f"s_and_b32 s{sC1}, s3, 1")
    a(f"s_lshl_b32 s{sC1}, s{sC1}, 9")
    a(f"s_lshl_b32 s{sT0}, s{sDT}, 16")
    a(f"s_add_u32 s{sC1}, s{sC1}, s{sT0}")
    op = Op('KC', [S5] * 8, 1024, sC1, 2, 6)
    setup_dma(a, op)
    setup_frag(a, op, sWB)
    return op


def c_items(op):
    return [(op, st, 'v', 128 + st * 32) for st in range(4)]


def mix_start(a, sdst):
    a(f"s_mul_i32 s{sdst}, s3, 6")
    a("s_cmp_eq_u32 s3, 3")
    a(f"s_cselect_b32 s{sdst}, 17, s{sdst}")


def make_w2_op(a, setup_km_frag):
    srd(a, S6, 'w2')
    mix_start(a, sC2)
    a(f"s_lshl_b32 s{sC2}, s{sC2}, 18")
    a(f"s_lshl_b32 s{sT0}, s{sST}, 7")
    a(f"s_add_u32 s{sC2}, s{sC2}, s{sT0}")
    op = Op('KM', [S6] * 8, 4096, sC2, 4, 10)
    if setup_km_frag:
        setup_frag(a, op, sWB)
    return op


def w2_issue(a, op, name):
    setup_dma(a, op)
    l1 = a.newlabel("w2a")
    a("s_cmp_ge_u32 s3, 2")
    a(f"s_cbranch_scc1 {l1}")
    emit_groups(a, dma_groups(op, 5, 4 * SLOT, sWB, name + "o"))
    a.label(l1)
    for st in range(4):
        emit_groups(a, dma_groups(op, st, st * SLOT, sWB, f"{name}{st}"))


def w2_drain(a, op, name, extra):
    l2 = a.newlabel("w2b")
    a("s_cmp_ge_u32 s3, 2")
    a(f"s_cbranch_scc1 {l2}")
    if name + "o" in a.vmq:
        a.vwait(name + "o")
    for j in range(4):
        reads(a, op, 4 * SLOT, j, 5 * 32 + j * 8, 'a')
    a("s_waitcnt lgkmcnt(0)")
    a.label(l2)
    for st in range(4):
        if f"{name}{st}" not in a.vmq:
            a.vmq.insert(st, f"{name}{st}")
    items = [(op, st, 'a', st * 32) for st in range(5)] + extra
    preload(a, items, 4, name, 48)


def kernel(a):
    name = NAME + "_kernel"
    a.raw(f".globl {name}")
    a.raw(".p2align 8")
    a.raw(f".type {name},@function")
    a.label(name)
    a("s_cmp_ge_u32 s2, 256")
    a("s_cbranch_scc1 L_end")
    a("s_load_dwordx16 s[64:79], s[0:1], 0")
    a("s_load_dwordx16 s[80:95], s[0:1], 64")
    a("s_load_dwordx4 s[96:99], s[0:1], 128")
    a("v_and_b32 v1, 63, v0")
    a("v_lshrrev_b32 v2, 6, v0")
    if STAMPS:
        a("v_mov_b32 v31, 0")
    a(f"s_and_b32 s{sXCD}, s2, 7")
    a(f"s_lshr_b32 s{sR}, s2, 3")
    a("v_readfirstlane_b32 s3, v2")
    a(f"s_lshr_b32 s{sST}, s{sXCD}, 1")
    a(f"s_lshl_b32 s{sST}, s{sST}, 3")
    a(f"s_and_b32 s{sT0}, s{sR}, 7")
    a(f"s_add_u32 s{sST}, s{sST}, s{sT0}")
    a(f"s_and_b32 s{sDT}, s{sXCD}, 1")
    a(f"s_lshl_b32 s{sDT}, s{sDT}, 2")
    a(f"s_lshr_b32 s{sT0}, s{sR}, 3")
    a(f"s_add_u32 s{sDT}, s{sDT}, s{sT0}")
    a(f"s_mul_i32 s{sWB}, s3, {WREG}")
    a("s_waitcnt lgkmcnt(0)")
    a.stamp(0)
    a.cstamp(62)
    srd(a, SDBG, 'dbg')
    a("s_cmp_ge_u32 s2, 192")
    a("s_cbranch_scc1 L_apath")

    srd(a, S0, 'x')
    srd(a, S1, 'gw')
    a(f"s_lshl_b32 s{sT2}, s2, 2")
    a(f"s_add_u32 s{sT2}, s{sT2}, s3")
    a(f"s_mul_i32 s{sT0}, s{sT2}, {LNR*1024}")
    a("v_lshlrev_b32 v30, 4, v1")
    for r in range(LNR):
        a(f"s_add_u32 s{sT1}, s{sT0}, {r*1024}")
        a.vm(f"buffer_load_dwordx4 v[{32+4*r}:{35+4*r}], v30, s[{S0}:{S0+3}], s{sT1} offen", "lnx")
    a.vm(f"buffer_load_dwordx4 v[44:47], v30, s[{S1}:{S1+3}], 0 offen", "lnx")
    bu_share_touch(a)
    srdws(a, S2, 'hln')
    srdws(a, S3, 'g')
    a(f"s_lshr_b32 s{sA}, s{sR}, 3")
    a(f"s_lshl_b32 s{sA}, s{sA}, 3")
    a(f"s_add_u32 s{sA}, s{sA}, s{sXCD}")
    a(f"s_and_b32 s{sB}, s{sR}, 7")
    a(f"s_mul_i32 s{sFLG}, s{sB}, 22")
    a(f"s_add_u32 s{sFLG}, s{sFLG}, s{sA}")
    srd(a, S4, 'w1')
    a(f"s_mul_i32 s{sC0}, s3, {512*2752}")
    a(f"s_lshl_b32 s{sT1}, s{sA}, 7")
    a(f"s_add_u32 s{sC0}, s{sC0}, s{sT1}")
    opW1 = Op('KM', [S4] * 8, 2752, sC0, 4, 10)
    setup_dma(a, opW1)
    a(f"s_cmp_ge_u32 s{sA}, 22")
    a("s_cbranch_scc1 L_lpre")
    a(f"s_lshl_b32 s{sT3}, s{sB}, 2")
    a(f"s_add_u32 s{sT3}, s{sT3}, s3")
    a(f"s_mul_i32 s{sT3}, s{sT3}, {64*2752}")
    a(f"s_add_u32 s{sT3}, s{sT3}, s{sT1}")
    a("v_mul_u32_u24 v18, 2752, v1")
    a.vm(f"buffer_load_dword v5, v18, s[{S4}:{S4+3}], s{sT3} offen")
    a.vm(f"buffer_load_dword v5, v18, s[{S4}:{S4+3}], s{sT3} offen offset:124")
    for i in range(NSLOT):
        emit_groups(a, dma_groups(opW1, i, i * SLOT, sWB, f"g{i}"))
    a("s_waitcnt vmcnt(43)")
    a("s_branch L_ln")
    a.label("L_lpre")
    a(f"s_lshl_b32 s{sFLG}, s{sR}, 1")
    a(f"s_add_u32 s{sFLG}, s{sFLG}, s{sXCD}")
    a(f"s_add_u32 s{sFLG}, s{sFLG}, {176 - 32 - 6}")
    a("s_waitcnt vmcnt(1)")
    a.label("L_ln")
    ln_compute(a)
    setup_frag(a, opW1, sWB)
    set_flag(a, 1)
    a.stamp(1)
    a(f"s_cmp_ge_u32 s{sA}, 22")
    a("s_cbranch_scc1 L_lpath")

    a.vmq = [f"g{i}" for i in range(NSLOT)]
    opC = make_c_op(a)
    opW2 = make_w2_op(a, False)
    items = [(opW1, st, 'a', st * 32) for st in range(8)]
    preload(a, items, NSLOT, "g", 36)
    w2_share_touch(a)
    c_share_touch(a)
    srd(a, S1, 'b1')
    a("v_and_b32 v19, 3, v0")
    a("v_lshlrev_b32 v19, 5, v19")
    a(f"s_lshl_b32 s{sT1}, s{sA}, 7")
    a.vm(f"buffer_load_dwordx4 v[20:23], v19, s[{S1}:{S1+3}], s{sT1} offen")
    a.vm(f"buffer_load_dwordx4 v[24:27], v19, s[{S1}:{S1+3}], s{sT1} offen offset:16")
    srdws(a, S3, 'u')
    a(f"s_lshl_b32 s{sC0}, s3, 19")
    a(f"s_lshl_b32 s{sT1}, s{sB}, 7")
    a(f"s_add_u32 s{sC0}, s{sC0}, s{sT1}")
    opH = Op('KM', [S2] * 8, 1024, sC0, 4, 10)
    setup_dma(a, opH)
    a.stamp(2)
    a("v_lshlrev_b32 v14, 2, v1")
    a("s_mov_b32 exec_hi, 0xffff")
    wait_flags(a, True, 0x01010101)
    a.stamp(3)
    for i in range(NSLOT):
        emit_groups(a, dma_groups(opH, i, i * SLOT, sWB, f"h{i}"))

    def mf1(st, j, fr):
        r = []
        for qm in range(2):
            for qn in range(2):
                acc = 64 + (qm * 2 + qn) * 16
                A = st * 32 + j * 8 + qm * 4
                B = fr + qn * 4
                c = "0" if (st == 0 and j == 0) else f"v[{acc}:{acc+15}]"
                r.append(f"v_mfma_f32_32x32x16_bf16 v[{acc}:{acc+15}], a[{A}:{A+3}], v[{B}:{B+3}], {c}")
        return r
    stream_gemm(a, opH, list(range(8)), [i % NSLOT for i in range(8)], mf1, "h", NSLOT, 16)
    a.stamp(4)
    write_partial(a, 'v', 64, 0, True)
    a("s_waitcnt lgkmcnt(0)")
    a("s_barrier")
    read_partials(a, [(0, 64)])
    a("s_waitcnt lgkmcnt(0)")
    a("s_barrier")
    a("v_mov_b32 v28, v14")
    a("v_mov_b32 v29, v16")
    w2_issue(a, opW2, "w")
    a("v_mov_b32 v14, v28")
    a("v_mov_b32 v16, v29")
    for i in range(16):
        a(f"v_add_f32 v{64+i}, v{64+i}, v{80+i}")
        a(f"v_add_f32 v{96+i}, v{96+i}, v{112+i}")
    for i in range(16):
        a(f"v_add_f32 v{64+i}, v{64+i}, v{96+i}")
    for k in range(8):
        a(f"v_cvt_pk_bf16_f32 v80, v{64+2*k}, v{65+2*k}")
        a(f"v_lshlrev_b32 v81, 16, v80")
        a(f"v_and_b32 v80, 0xffff0000, v80")
        a(f"v_lshlrev_b32 v82, 16, v{20+k}")
        a(f"v_and_b32 v83, 0xffff0000, v{20+k}")
        a(f"v_add_f32 v81, v81, v82")
        a(f"v_add_f32 v80, v80, v83")
        a(f"v_cvt_pk_bf16_f32 v80, v81, v80")
        a(f"v_lshlrev_b32 v{64+2*k}, 16, v80")
        a(f"v_and_b32 v{65+2*k}, 0xffff0000, v80")
    c1 = -2 * 0.7978845608028654 * 1.4426950408889634
    c2 = c1 * 0.044715
    a(f"s_mov_b32 s{sT0}, {f2u(c1):#x}")
    a(f"s_mov_b32 s{sT1}, {f2u(c2):#x}")
    a(f"v_mov_b32 v100, s{sT0}")
    for i in range(16):
        a(f"v_mul_f32 v{80+i}, v{64+i}, v{64+i}")
        a(f"v_fma_f32 v{80+i}, v{80+i}, s{sT1}, v100")
        a(f"v_mul_f32 v{80+i}, v{80+i}, v{64+i}")
        a(f"v_exp_f32 v{80+i}, v{80+i}")
    for i in range(16):
        a(f"v_add_f32 v{80+i}, 1.0, v{80+i}")
        a(f"v_rcp_f32 v{80+i}, v{80+i}")
    a("s_nop 0")
    for i in range(16):
        a(f"v_mul_f32 v{64+i}, v{64+i}, v{80+i}")
    for k in range(8):
        a(f"v_cvt_pk_bf16_f32 v{80+k}, v{64+2*k}, v{65+2*k}")
    a(f"s_lshl_b32 s{sT0}, s{sA}, 6")
    a(f"v_lshl_add_u32 v17, v16, 4, s{sT0}")
    a("v_cmp_gt_u32 vcc, 1376, v17")
    a("s_nop 1")
    for k in range(8):
        a(f"v_cndmask_b32 v{80+k}, 0, v{80+k}, vcc")
    a(f"s_lshl_b32 s{sT0}, s{sB}, 6")
    a(f"v_add_u32 v14, s{sT0}, v14")
    a(f"v_mul_u32_u24 v14, {URS}, v14")
    a("v_lshl_add_u32 v14, v17, 1, v14")
    a.vm(f"buffer_store_dwordx4 v[80:83], v14, s[{S3}:{S3+3}], 0 offen sc1")
    a.vm(f"buffer_store_dwordx4 v[84:87], v14, s[{S3}:{S3+3}], 0 offen offset:16 sc1")
    set_flag(a, 3)
    a.stamp(5)
    w2_drain(a, opW2, "w", c_items(opC))
    a.stamp(6)
    a("s_branch L_p3")

    a.label("L_lpath")
    a.vmq = []
    opC = make_c_op(a)
    opW2 = make_w2_op(a, False)
    w2_share_touch(a)
    c_share_touch(a)
    w2_issue(a, opW2, "lw")
    w2_drain(a, opW2, "lw", c_items(opC))
    a.stamp(6)
    a("s_branch L_p3")

    a.label("L_apath")
    a.vmq = []
    srd(a, S0, 'x')
    srd(a, S1, 'bre')
    srd(a, S2, 'bim')
    a(f"s_lshr_b32 s{sA}, s{sXCD}, 1")
    a(f"s_lshl_b32 s{sA}, s{sA}, 2")
    a(f"s_and_b32 s{sT0}, s{sR}, 3")
    a(f"s_add_u32 s{sA}, s{sA}, s{sT0}")
    a(f"s_and_b32 s{sB}, s{sXCD}, 1")
    a(f"s_lshl_b32 s{sB}, s{sB}, 1")
    a(f"s_lshr_b32 s{sT0}, s{sR}, 2")
    a(f"s_and_b32 s{sT0}, s{sT0}, 1")
    a(f"s_add_u32 s{sB}, s{sB}, s{sT0}")
    a(f"s_lshl_b32 s{sFLG}, s{sB}, 4")
    a(f"s_add_u32 s{sFLG}, s{sFLG}, s{sA}")
    a(f"s_add_u32 s{sFLG}, s{sFLG}, 192")
    a(f"s_lshl_b32 s{sT0}, s3, 15")
    a(f"s_lshl_b32 s{sC0}, s{sA}, 17")
    a(f"s_add_u32 s{sC0}, s{sC0}, s{sT0}")
    a(f"s_lshl_b32 s{sC1}, s{sB}, 17")
    a(f"s_add_u32 s{sC1}, s{sC1}, s{sT0}")
    a(f"s_lshl_b32 s{sC2}, s3, 12")
    a(f"s_mul_i32 s{sC3}, s3, 24576")
    a(f"s_add_u32 s{sC3}, s{sC3}, 49152")
    opA = Op('KC', [S0] * 8, 1024, sC0, 2, 6, perm=True)
    opB = Op('KC', [S1] * 4 + [S2] * 4, 1024, sC1, 2, 10)
    opB.rowoff = [(i & 3) * 8 * 1024 for i in range(8)]
    setup_dma(a, opA)

    def bu_dma(st):
        s = st % 3
        return (dma_groups(opA, st, s * 16384, sC2, f"b{st}", rng=range(4)) +
                dma_groups(opB, st, s * 8192, sC3, f"b{st}"))
    bu_share_touch(a)
    emit_groups(a, bu_dma(0))
    emit_groups(a, bu_dma(1))
    srd(a, S3, 'lre')
    srd(a, S4, 'lim')
    srd(a, S5, 'ldt')
    a("v_and_b32 v30, 31, v1")
    a(f"s_lshl_b32 s{sT0}, s{sB}, 7")
    a(f"s_lshl_b32 s{sT1}, s3, 5")
    a(f"s_add_u32 s{sT0}, s{sT0}, s{sT1}")
    a(f"v_add_u32 v30, s{sT0}, v30")
    a("v_lshlrev_b32 v29, 1, v30")
    a.vm(f"buffer_load_ushort v26, v29, s[{S3}:{S3+3}], 0 offen", "lam")
    a.vm(f"buffer_load_ushort v27, v29, s[{S4}:{S4+3}], 0 offen", "lam")
    a.vm(f"buffer_load_ushort v28, v29, s[{S5}:{S5+3}], 0 offen", "lam")
    setup_frag(a, opA, None)
    setup_frag(a, opB, sC3)
    FRG = [192, 216, 240, 40]

    def freg(j, part):
        if j == 2:
            return [240, 248, 32][part]
        return FRG[j] + part * 8

    def bu_R(st, half):
        s = st % 3
        for jj in range(2):
            j = half * 2 + jj
            reads(a, opA, s * 16384, j, freg(j, 0))
            reads(a, opA, s * 16384 + 8192, j, freg(j, 1))
            reads(a, opB, s * 8192, j, freg(j, 2))

    def bu_M(st, j):
        r = []
        for tl in range(2):
            for qm in range(2):
                for qn in range(2):
                    acc = 64 + tl * 64 + (qm * 2 + qn) * 16
                    A = freg(j, tl) + qm * 4
                    B = freg(j, 2) + qn * 4
                    c = "0" if (st == 0 and j == 0) else f"v[{acc}:{acc+15}]"
                    r.append(f"v_mfma_f32_32x32x16_bf16 v[{acc}:{acc+15}], v[{A}:{A+3}], v[{B}:{B+3}], {c}")
        return r
    a.vwait("b0")
    a("s_barrier")
    emit_groups(a, bu_dma(2))
    bu_R(0, 0)
    for st in range(8):
        bu_R(st, 1)
        a("s_waitcnt lgkmcnt(12)")
        for j in range(2):
            for l in bu_M(st, j):
                a(l)
        grps = []
        if st + 1 < 8:
            a.vwait(f"b{st+1}")
            a.stamp(16 + st)
            a("s_waitcnt lgkmcnt(0)")
            a("s_barrier")
            bu_R(st + 1, 0)
            if st + 3 < 8:
                grps = bu_dma(st + 3)
        else:
            a("s_waitcnt lgkmcnt(0)")
        k = 0
        for j in range(2, 4):
            for l in bu_M(st, j):
                if k < len(grps):
                    emit_groups(a, [grps[k]])
                k += 1
                a(l)
    a.stamp(1)
    a.vwait0()
    lam_compute(a, 26, 20, 14)
    a("v_mov_b32 v24, v20")
    a("v_mov_b32 v25, v21")
    for _ in range(5):
        csq(a, 24, 25, 14, 15)
    for tl in range(2):
        a(f"v_mov_b32 v{32+4*tl}, 0")
        a(f"v_mov_b32 v{33+4*tl}, 0")
    for t in range(32):
        qm, i = t >> 4, t & 15
        for tl in range(2):
            xr = 64 + tl * 64 + (qm * 2 + 0) * 16 + i
            xi = 64 + tl * 64 + (qm * 2 + 1) * 16 + i
            e = 32 + 4 * tl
            cmul_add(a, e, e + 1, 20, 21, e, e + 1, xr, xi, 14 + 2 * tl, 15 + 2 * tl)
    for tl in range(2):
        for c in range(2):
            a(f"v_mov_b32 v{34+4*tl+c}, v{32+4*tl+c}")
    a("s_nop 1")
    for tl in range(2):
        for c in range(2):
            a(f"v_permlane32_swap_b32 v{32+4*tl+c}, v{34+4*tl+c}")
    a("s_nop 1")
    cmul_add(a, 40, 41, 24, 25, 32, 33, 34, 35, 14, 15)
    cmul_add(a, 40, 41, 24, 25, 40, 41, 36, 37, 14, 15)
    cmul_add(a, 40, 41, 24, 25, 40, 41, 38, 39, 14, 15)
    srdws(a, S3, 'e')
    a("v_lshlrev_b32 v29, 3, v30")
    a(f"s_lshl_b32 s{sT0}, s{sA}, 12")
    a("s_mov_b32 exec_hi, 0")
    a.vm(f"buffer_store_dwordx2 v[40:41], v29, s[{S3}:{S3+3}], s{sT0} offen sc1")
    a("s_mov_b64 exec, -1")
    set_flag(a, 2)
    a.stamp(2)
    opC = make_c_op(a)
    opW2 = make_w2_op(a, True)
    c_share_touch(a)
    a.stamp(3)
    a("v_mov_b32 v42, 0")
    a("v_mov_b32 v43, 0")
    a(f"s_cmp_eq_u32 s{sA}, 0")
    a("s_cbranch_scc1 L_a_nocarry")
    a(f"s_lshl_b32 s{sT0}, s{sB}, 4")
    a(f"s_add_u32 s{sT0}, s{sT0}, 192")
    a(f"v_add_u32 v14, s{sT0}, v1")
    a(f"s_lshl_b32 s{sT2}, 1, s{sA}")
    a(f"s_sub_u32 exec_lo, s{sT2}, 1")
    a(f"s_mov_b32 exec_hi, 0")
    wait_flags(a, False, 2)
    for j in range(15):
        a(f"s_mov_b32 s{sT0}, {j*4096}")
        a(f"buffer_load_dwordx2 v[{192+2*j}:{193+2*j}], v29, s[{S3}:{S3+3}], s{sT0} offen sc1")
    a("v_mov_b32 v44, v24")
    a("v_mov_b32 v45, v25")
    csq(a, 44, 45, 14, 15)
    csq(a, 44, 45, 14, 15)
    a("s_waitcnt vmcnt(0)")
    for j in range(15):
        a(f"s_cmp_le_u32 s{sA}, {j}")
        a("s_cbranch_scc1 L_a_nocarry")
        cmul_add(a, 42, 43, 44, 45, 42, 43, 192 + 2 * j, 193 + 2 * j, 14, 15)
    a.label("L_a_nocarry")
    a.stamp(4)
    cmul_add(a, 46, 47, 24, 25, 42, 43, 32, 33, 14, 15)
    cmul_add(a, 48, 49, 24, 25, 46, 47, 34, 35, 14, 15)
    cmul_add(a, 50, 51, 24, 25, 48, 49, 36, 37, 14, 15)
    a("v_cmp_lt_u32 vcc, 31, v1")
    a("s_nop 1")
    a("v_cndmask_b32 v32, v42, v46, vcc")
    a("v_cndmask_b32 v33, v43, v47, vcc")
    a("v_cndmask_b32 v36, v48, v50, vcc")
    a("v_cndmask_b32 v37, v49, v51, vcc")
    a("v_lshrrev_b32 v14, 5, v1")
    a("v_and_b32 v15, 31, v1")
    a("v_lshlrev_b32 v15, 1, v15")
    a(f"s_lshl_b32 s{sT0}, s3, 6")
    a(f"v_add_u32 v15, s{sT0}, v15")
    a("v_lshlrev_b32 v16, 6, v14")
    a("v_xor_b32 v15, v15, v16")
    a("v_lshl_add_u32 v29, v14, 14, v15")
    for t in range(32):
        qm, i = t >> 4, t & 15
        for tl in range(2):
            xr = 64 + tl * 64 + (qm * 2 + 0) * 16 + i
            xi = 64 + tl * 64 + (qm * 2 + 1) * 16 + i
            e = 32 + 4 * tl
            t0, t1 = 14 + 2 * tl, 15 + 2 * tl
            pk = 40 + ((t * 2 + tl) & 7)
            cmul_add(a, e, e + 1, 20, 21, e, e + 1, xr, xi, t0, t1)
            a(f"v_mul_f32 v{t0}, v22, v{e}")
            a(f"v_mul_f32 v{t1}, -v22, v{e+1}")
            a(f"v_fma_f32 v{t0}, -v23, v{e+1}, v{t0}")
            a(f"v_fma_f32 v{t1}, -v23, v{e}, v{t1}")
            a(f"v_cvt_pk_bf16_f32 v{pk}, v{t0}, v{t1}")
            off = (tl * 64 + t) * 512
            a(f"ds_write_b16 v29, v{pk} offset:{off}")
            a(f"ds_write_b16_d16_hi v29, v{pk} offset:{off+256}")
    a("s_waitcnt lgkmcnt(0)")
    a("s_barrier")
    srdws(a, S4, 'h')
    a("v_lshrrev_b32 v14, 5, v1")
    a(f"s_lshl_b32 s{sT0}, s3, 5")
    a(f"v_add_u32 v14, s{sT0}, v14")
    a("v_and_b32 v15, 31, v1")
    a("v_lshlrev_b32 v16, 4, v15")
    a(f"s_and_b32 s{sT0}, s3, 1")
    a(f"s_lshl_b32 s{sT0}, s{sT0}, 6")
    a(f"v_xor_b32 v16, s{sT0}, v16")
    a("v_lshl_add_u32 v16, v14, 9, v16")
    a("v_lshrrev_b32 v17, 4, v15")
    a("v_lshlrev_b32 v17, 10, v17")
    a("v_and_b32 v15, 15, v15")
    a("v_lshl_add_u32 v17, v15, 4, v17")
    a("v_lshl_add_u32 v17, v14, 11, v17")
    a(f"s_lshl_b32 s{sT0}, s{sA}, 18")
    a(f"s_lshl_b32 s{sT1}, s{sB}, 8")
    a(f"s_add_u32 s{sT0}, s{sT0}, s{sT1}")
    for i in range(16):
        a(f"ds_read_b128 v[{64+4*i}:{67+4*i}], v16 offset:{i*1024}")
    for i in range(16):
        a(f"s_waitcnt lgkmcnt({15-i})")
        a(f"s_add_u32 s{sT1}, s{sT0}, {i*4096}")
        a.vm(f"buffer_store_dwordx4 v[{64+4*i}:{67+4*i}], v17, s[{S4}:{S4+3}], s{sT1} offen sc1", "hst")
    a("s_barrier")
    l1 = a.newlabel("hw")
    w2_issue(a, opW2, "aw")
    a("s_waitcnt vmcnt(32)")
    set_flag(a, 6, "hst")
    a.stamp(5)
    w2_drain(a, opW2, "aw", c_items(opC))
    a.stamp(6)

    a.label("L_p3")
    a.vmq = []
    srdws(a, S0, 'h')
    srdws(a, S1, 'u')
    a(f"s_lshl_b32 s{sC0}, s{sST}, 17")
    a(f"s_lshl_b32 s{sT0}, s3, 9")
    a(f"s_add_u32 s{sC0}, s{sC0}, s{sT0}")
    mix_start(a, sC1)
    a(f"s_lshl_b32 s{sC1}, s{sC1}, 7")
    a(f"s_mul_i32 s{sT0}, s{sDT}, {64*URS}")
    a(f"s_add_u32 s{sC1}, s{sC1}, s{sT0}")
    opHs = Op('KC', [S0] * 8, 2048, sC0, 2, 6)
    opU = Op('KC', [S1] * 8, URS, sC1, 12, 6)
    setup_dma(a, opHs)
    setup_dma(a, opU)
    for r in range(64, 128):
        a(f"v_mov_b32 v{r}, 0")

    def epi_loads():
        srd(a, S2, 'x')
        srd(a, S3, 'dsk')
        srd(a, S4, 'b2')
        srdws(a, S5, 'g')
        srd(a, S6, 'out')
        a("v_lshrrev_b32 v20, 2, v0")
        a(f"s_lshl_b32 s{sT0}, s{sST}, 6")
        a(f"v_add_u32 v20, s{sT0}, v20")
        a("v_and_b32 v21, 3, v0")
        a("v_lshlrev_b32 v21, 4, v21")
        a(f"s_lshl_b32 s{sT0}, s{sDT}, 6")
        a(f"v_add_u32 v21, s{sT0}, v21")
        a("v_lshl_add_u32 v22, v20, 9, v21")
        a("v_lshlrev_b32 v23, 1, v22")
        a.vm(f"buffer_load_dwordx4 v[192:195], v23, s[{S2}:{S2+3}], 0 offen")
        a.vm(f"buffer_load_dwordx4 v[196:199], v23, s[{S2}:{S2+3}], 0 offen offset:16")
        a("v_lshlrev_b32 v23, 1, v21")
        a.vm(f"buffer_load_dwordx4 v[200:203], v23, s[{S3}:{S3+3}], 0 offen")
        a.vm(f"buffer_load_dwordx4 v[204:207], v23, s[{S3}:{S3+3}], 0 offen offset:16")
        a("v_lshlrev_b32 v23, 1, v20")
        a.vm(f"buffer_load_ushort v208, v23, s[{S4}:{S4+3}], 0 offen")
        a("v_mul_u32_u24 v23, 0xaaab, v20")
        a("v_lshrrev_b32 v23, 17, v23")
        a("v_mul_u32_u24 v24, 3, v23")
        a("v_sub_u32 v24, v20, v24")
        a("v_lshlrev_b32 v24, 2, v24")
        a("v_lshl_add_u32 v23, v23, 7, v24")
        a.vm(f"buffer_load_dword v209, v23, s[{S5}:{S5+3}], 0 offen sc1")

    def ssm_part():
        a(f"s_lshr_b32 s{sT0}, s{sST}, 1")
        a(f"s_add_u32 s{sT0}, s{sT0}, 192")
        a(f"v_lshl_add_u32 v14, v1, 4, s{sT0}")
        a("s_mov_b64 exec, 15")
        wait_flags(a, False, 4)
        a.stamp(7)
        for i in range(4):
            emit_groups(a, dma_groups(opHs, i, i * SLOT, sWB, f"s{i}"))

        def mf(st, j, fr):
            r = []
            for qm in range(2):
                for qn in range(2):
                    acc = 192 + (qm * 2 + qn) * 16
                    A = 128 + st * 32 + j * 8 + qm * 4
                    B = fr + qn * 4
                    c = "0" if (st == 0 and j == 0) else f"a[{acc}:{acc+15}]"
                    r.append(f"v_mfma_f32_32x32x16_bf16 a[{acc}:{acc+15}], v[{A}:{A+3}], v[{B}:{B+3}], {c}")
            return r
        stream_gemm(a, opHs, list(range(4)), list(range(4)), mf, "s", 4, 24)
        a.stamp(8)

    def mix_part():
        a(f"s_mul_i32 s{sT0}, s{sDT}, 22")
        a(f"v_add_u32 v14, s{sT0}, v1")
        a(f"s_mov_b64 exec, {(1 << 22) - 1:#x}")
        wait_flags(a, False, 2)
        a.stamp(9)

        def mf(st, j, fr):
            r = []
            for qm in range(2):
                for qn in range(2):
                    acc = 64 + (qm * 2 + qn) * 16
                    A = fr + qm * 4
                    B = st * 32 + j * 8 + qn * 4
                    r.append(f"v_mfma_f32_32x32x16_bf16 v[{acc}:{acc+15}], v[{A}:{A+3}], a[{B}:{B+3}], v[{acc}:{acc+15}]")
            return r
        l1 = a.newlabel("mxa")
        a("s_cmp_ge_u32 s3, 2")
        a(f"s_cbranch_scc1 {l1}")
        emit_groups(a, dma_groups(opU, 5, 4 * SLOT, sWB, "uo"))
        a.label(l1)
        for i in range(4):
            emit_groups(a, dma_groups(opU, i, i * SLOT, sWB, f"u{i}"))
        if SSM_FIRST:
            epi_loads()
        l2 = a.newlabel("mxb")
        a("s_cmp_ge_u32 s3, 2")
        a(f"s_cbranch_scc1 {l2}")
        a.vwait("uo")
        for j in range(4):
            reads(a, opU, 4 * SLOT, j, FX + j * 8)
        a("s_waitcnt lgkmcnt(0)")
        for j in range(4):
            for l in mf(5, j, FX + j * 8):
                a(l)
        a.label(l2)
        emit_groups(a, dma_groups(opU, 4, 4 * SLOT, sWB, "u4"))
        stream_gemm(a, opU, list(range(5)), list(range(5)), mf, "u", 5, 28)
        a.stamp(10)

    if SSM_FIRST:
        ssm_part()
        mix_part()
    else:
        mix_part()
        ssm_part()
    if not SSM_FIRST:
        epi_loads()
    write_partial(a, 'v', 64, 0, True)
    write_partial(a, 'a', 192, PSTR, False)
    a("s_waitcnt lgkmcnt(0)")
    a("s_barrier")
    read_partials(a, [(0, 64), (PSTR, 128)])
    a("s_waitcnt lgkmcnt(15)")
    for i in range(16):
        a(f"v_add_f32 v{64+i}, v{64+i}, v{80+i}")
        a(f"v_add_f32 v{96+i}, v{96+i}, v{112+i}")
    for i in range(16):
        a(f"v_add_f32 v{64+i}, v{64+i}, v{96+i}")
    a("s_waitcnt lgkmcnt(0)")
    for i in range(16):
        a(f"v_add_f32 v{128+i}, v{128+i}, v{144+i}")
        a(f"v_add_f32 v{160+i}, v{160+i}, v{176+i}")
    for i in range(16):
        a(f"v_add_f32 v{96+i}, v{128+i}, v{160+i}")
    a("s_waitcnt vmcnt(0)")
    a("v_lshlrev_b32 v208, 16, v208")
    a("v_sub_f32 v210, 1.0, v209")
    bf16r(a, 210, 210)
    for k in range(8):
        a(f"v_cvt_pk_bf16_f32 v80, v{64+2*k}, v{65+2*k}")
        a(f"v_lshlrev_b32 v81, 16, v80")
        a(f"v_and_b32 v80, 0xffff0000, v80")
        a(f"v_add_f32 v81, v81, v208")
        a(f"v_add_f32 v80, v80, v208")
        a(f"v_cvt_pk_bf16_f32 v80, v81, v80")
        a(f"v_lshlrev_b32 v81, 16, v80")
        a(f"v_and_b32 v80, 0xffff0000, v80")
        a(f"v_mul_f32 v81, v81, v210")
        a(f"v_mul_f32 v80, v80, v210")
        a(f"v_cvt_pk_bf16_f32 v80, v81, v80")
        a(f"v_lshlrev_b32 v{64+2*k}, 16, v80")
        a(f"v_and_b32 v{65+2*k}, 0xffff0000, v80")
        a(f"v_lshlrev_b32 v81, 16, v{192+k}")
        a(f"v_and_b32 v80, 0xffff0000, v{192+k}")
        a(f"v_lshlrev_b32 v82, 16, v{200+k}")
        a(f"v_and_b32 v83, 0xffff0000, v{200+k}")
        a(f"v_mul_f32 v81, v81, v82")
        a(f"v_mul_f32 v80, v80, v83")
        a(f"v_cvt_pk_bf16_f32 v80, v81, v80")
        a(f"v_lshlrev_b32 v81, 16, v80")
        a(f"v_and_b32 v80, 0xffff0000, v80")
        a(f"v_fma_f32 v81, 2.0, v{96+2*k}, v81")
        a(f"v_fma_f32 v80, 2.0, v{97+2*k}, v80")
        a(f"v_mul_f32 v81, v81, v209")
        a(f"v_mul_f32 v80, v80, v209")
        a(f"v_add_f32 v{64+2*k}, v{64+2*k}, v81")
        a(f"v_add_f32 v{65+2*k}, v{65+2*k}, v80")
    a("v_lshlrev_b32 v23, 2, v22")
    for i in range(4):
        a(f"buffer_store_dwordx4 v[{64+4*i}:{67+4*i}], v23, s[{S6}:{S6+3}], 0 offen offset:{16*i}")
    if STAMPS:
        a("s_waitcnt vmcnt(0)")
        a.stamp(11)
        a.stamp_flush()
    a.label("L_end")
    a("s_endpgm")


def main():
    ref = open(f"cdna_kernels/{NAME}.s.ref").read().split("\n")
    head = [l for l in ref if l.startswith(";") and "@launch" not in l and "Override" not in l and "grid=ceil" not in l]
    out = head + [
        "; @launch grid=(256,1,1) block=(256,1,1) lds=163840",
        '.amdgcn_target "amdgcn-amd-amdhsa--gfx950"',
        ".text",
    ]
    a = Asm()
    kernel(a)
    out += a.lines
    out.append('.section .rodata,"a"')
    out.append(f""".p2align 6
.amdhsa_kernel {NAME}_kernel
  .amdhsa_next_free_vgpr 512
  .amdhsa_next_free_sgpr 102
  .amdhsa_accum_offset 256
  .amdhsa_group_segment_fixed_size 0
  .amdhsa_kernarg_size 144
  .amdhsa_user_sgpr_count 2
  .amdhsa_user_sgpr_kernarg_segment_ptr 1
  .amdhsa_system_sgpr_workgroup_id_x 1
.end_amdhsa_kernel
""")
    path = sys.argv[1] if len(sys.argv) > 1 else f"fused.s"
    open(path, "w").write("\n".join(out) + "\n")


main()
```

```python
import os
import struct
import sys

NAME = "gated_mix__ssm_conv_s5__mixer_token_mlp__prompt"
STAMPS = os.environ.get("STAMPS") == "1"
SLEEP = int(os.environ.get("SLEEP", "4"))
SSM_FIRST = os.environ.get("MIXFIRST") != "1"

KP = dict(x=64, lre=66, lim=68, bre=70, bim=72, cre=74, cim=76, ldt=78, dsk=80,
          w1=84, b1=86, w2=88, b2=90, gw=92, out=94, dbg=96, ws=98)
SZ = dict(x=2048 * 512 * 2, lre=1024, lim=1024, bre=512 * 512 * 2, bim=512 * 512 * 2,
          cre=512 * 512 * 2, cim=512 * 512 * 2, ldt=1024, dsk=1024, w1=2048 * 1376 * 2,
          b1=1376 * 2, w2=1376 * 2048 * 2, b2=4096, gw=1024, out=2048 * 512 * 4, dbg=256)
WS = dict(
    hln=(0x0000000, 2048 * 512 * 2),
    g=(0x0200000, 768 * 128),
    e=(0x0300000, 16 * 512 * 8),
    fl=(0x0380000, 0x8000),
    u=(0x0400000, 512 * 1408 * 2),
    h=(0x0800000, 2048 * 1024 * 2),
)
URS = 1408 * 2
WREG = 40960
SLOT = 8192
NSLOT = 5
PSTR = 17408
LNR = 3

S0, S1, S2, S3, S4, S5, S6, S7 = 8, 12, 16, 20, 24, 28, 32, 36
SDBG = 4
sXCD, sR, sWB = 40, 41, 42
sT0, sT1, sT2, sT3, sT4 = 43, 44, 45, 46, 47
sST, sDT, sFLG, sA, sB, sC0, sC1, sT, sCNT = 52, 53, 54, 55, 56, 57, 58, 59, 60
sC2, sC3 = 61, 62
sN = 100
FSTR = 32
FL_LN, FL_U, FL_E, FL_H = 0, 0x2000, 0x4000, 0x5000

f2u = lambda f: struct.unpack("<I", struct.pack("<f", f))[0]


class Asm:
    def __init__(self):
        self.lines = []
        self.uid = 0
        self.vmq = []

    def __call__(self, s):
        self.lines.append("    " + s)

    def label(self, l):
        self.lines.append(l + ":")

    def newlabel(self, p):
        self.uid += 1
        return f"L_{p}_{self.uid}"

    def raw(self, s):
        self.lines.append(s)

    def vm(self, s, tag=None):
        self(s)
        self.vmq.append(tag)

    def vwait(self, tag):
        idx = max(i for i, t in enumerate(self.vmq) if t == tag)
        n = len(self.vmq) - 1 - idx
        assert n <= 63, n
        self(f"s_waitcnt vmcnt({n})")
        self.vmq = self.vmq[idx + 1:]

    def vwait0(self):
        self("s_waitcnt vmcnt(0)")
        self.vmq = []

    def stamp(self, idx):
        if STAMPS:
            self("s_memrealtime s[0:1]")
            self("s_waitcnt lgkmcnt(0)")
            self(f"v_writelane_b32 v31, s0, {idx}")

    def cstamp(self, idx):
        if STAMPS:
            self("s_memtime s[0:1]")
            self("s_waitcnt lgkmcnt(0)")
            self(f"v_writelane_b32 v31, s0, {idx}")

    def stamp_flush(self):
        if not STAMPS:
            return
        self.cstamp(63)
        self(f"s_add_u32 s{S0}, s{KP['ws']}, 0x2000000")
        self(f"s_addc_u32 s{S0+1}, s{KP['ws']+1}, 0")
        self(f"s_and_b32 s{S0+1}, s{S0+1}, 0xffff")
        self(f"s_mov_b32 s{S0+2}, 0x100000")
        self(f"s_mov_b32 s{S0+3}, 0x00020000")
        self(f"s_lshl_b32 s{sT0}, s2, 2")
        self(f"s_add_u32 s{sT0}, s{sT0}, s3")
        self(f"s_lshl_b32 s{sT0}, s{sT0}, 8")
        self("v_lshlrev_b32 v2, 2, v1")
        self(f"buffer_store_dword v31, v2, s[{S0}:{S0+3}], s{sT0} offen")


def srd(a, slot, key):
    p = KP[key]
    a(f"s_mov_b32 s{slot}, s{p}")
    a(f"s_and_b32 s{slot+1}, s{p+1}, 0xffff")
    a(f"s_mov_b32 s{slot+2}, {SZ[key]}")
    a(f"s_mov_b32 s{slot+3}, 0x00020000")


def srdws(a, slot, key):
    off, size = WS[key]
    p = KP['ws']
    a(f"s_add_u32 s{slot}, s{p}, {off}")
    a(f"s_addc_u32 s{slot+1}, s{p+1}, 0")
    a(f"s_and_b32 s{slot+1}, s{slot+1}, 0xffff")
    a(f"s_mov_b32 s{slot+2}, {size}")
    a(f"s_mov_b32 s{slot+3}, 0x00020000")


class Op:
    def __init__(self, kind, srds, rs, scur, vdma, vfrag, perm=False):
        self.kind = kind
        self.srds = srds
        self.rs = rs
        self.scur = scur
        self.vdma = vdma
        self.vfrag = vfrag
        self.perm = perm
        self.rowoff = [i * 8 * rs for i in range(8)]
        self.adv = 128 if kind == 'KC' else 64 * rs


def setup_dma(a, op):
    rs = op.rs
    a(f"v_lshrrev_b32 v14, 3, v1")
    a(f"v_mul_u32_u24 v14, {rs}, v14")
    a(f"v_and_b32 v15, 7, v1")
    if op.kind == 'KC':
        a(f"v_lshrrev_b32 v16, 4, v1")
        a(f"v_xor_b32 v15, v15, v16")
        a(f"v_lshlrev_b32 v15, 4, v15")
        a(f"v_add_u32 v{op.vdma}, v14, v15")
        a(f"v_xor_b32 v15, 64, v15")
        a(f"v_add_u32 v{op.vdma+1}, v14, v15")
    else:
        a(f"v_lshrrev_b32 v16, 2, v1")
        a(f"v_and_b32 v16, 4, v16")
        a(f"v_xor_b32 v15, v15, v16")
        a(f"v_lshl_add_u32 v{op.vdma}, v15, 4, v14")


def setup_frag(a, op, sbase):
    if op.kind == 'KC':
        a(f"v_and_b32 v14, 31, v1")
        if op.perm:
            a(f"v_lshrrev_b32 v15, 2, v14")
            a(f"v_and_b32 v15, 1, v15")
            a(f"v_lshlrev_b32 v15, 5, v15")
            a(f"v_lshrrev_b32 v16, 3, v14")
            a(f"v_lshl_add_u32 v15, v16, 2, v15")
            a(f"v_and_b32 v14, 3, v14")
            a(f"v_add_u32 v14, v14, v15")
        a(f"v_lshrrev_b32 v15, 1, v14")
        a(f"v_and_b32 v15, 7, v15")
        a(f"v_lshrrev_b32 v16, 5, v1")
        a(f"v_xor_b32 v15, v15, v16")
        a(f"v_lshlrev_b32 v15, 4, v15")
        a(f"v_lshl_add_u32 v14, v14, 7, v15")
        if sbase is None:
            a(f"v_mov_b32 v{op.vfrag}, v14")
        else:
            a(f"v_add_u32 v{op.vfrag}, s{sbase}, v14")
        for j in range(1, 4):
            a(f"v_xor_b32 v{op.vfrag+j}, {j<<5}, v{op.vfrag}")
    else:
        a(f"v_lshrrev_b32 v14, 5, v1")
        a(f"v_lshlrev_b32 v14, 3, v14")
        a(f"v_lshrrev_b32 v15, 2, v1")
        a(f"v_and_b32 v15, 3, v15")
        a(f"v_add_u32 v14, v14, v15")
        a(f"v_lshlrev_b32 v14, 7, v14")
        a(f"v_lshrrev_b32 v16, 4, v1")
        a(f"v_and_b32 v16, 1, v16")
        a(f"v_lshlrev_b32 v16, 1, v16")
        a(f"v_lshrrev_b32 v17, 1, v1")
        a(f"v_and_b32 v17, 1, v17")
        a(f"v_add_u32 v16, v16, v17")
        a(f"v_lshrrev_b32 v15, 1, v15")
        a(f"v_lshlrev_b32 v15, 2, v15")
        a(f"v_xor_b32 v16, v16, v15")
        a(f"v_lshl_add_u32 v14, v16, 4, v14")
        a(f"v_and_b32 v17, 1, v1")
        a(f"v_lshl_add_u32 v14, v17, 3, v14")
        a(f"v_add_u32 v{op.vfrag}, s{sbase}, v14")
        a(f"v_xor_b32 v{op.vfrag+1}, 64, v{op.vfrag}")


def dma_groups(op, st, ldsoff, sbase, tag, rng=range(8), m=0):
    out = []
    for i in rng:
        v = op.vdma + ((i & 1) if op.kind == 'KC' else 0)
        out.append(([f"s_add_u32 m0, s{sbase}, {ldsoff + i * 1024}",
                     f"s_add_u32 s{sT}, s{op.scur}, {op.rowoff[i] + st * op.adv}"],
                    f"buffer_load_dwordx4 v{v}, s[{op.srds[i]}:{op.srds[i]+3}], s{sT} offen lds", tag))
    return out


def emit_groups(a, grps):
    for pre, ld, tag in grps:
        for l in pre:
            a(l)
        a.vm(ld, tag)


def reads(a, op, ldsoff, j, dst, rf='v'):
    n = 0
    for q in range(2):
        d = dst + q * 4
        if op.kind == 'KC':
            off = ldsoff + q * (2048 if op.perm else 4096)
            a(f"ds_read_b128 {rf}[{d}:{d+3}], v{op.vfrag+j} offset:{off}")
            n += 1
        else:
            off = ldsoff + j * 2048
            a(f"ds_read_b64_tr_b16 {rf}[{d}:{d+1}], v{op.vfrag+q} offset:{off}")
            a(f"ds_read_b64_tr_b16 {rf}[{d+2}:{d+3}], v{op.vfrag+q} offset:{off+512}")
            n += 2
    return n


def preload(a, items, issued, name, sbase=None):
    for i in range(issued, min(NSLOT, len(items))):
        op, st, rf, dst = items[i]
        emit_groups(a, dma_groups(op, st, (i % NSLOT) * SLOT, sWB, f"{name}{i}"))
    for i, (op, st, rf, dst) in enumerate(items):
        a.vwait(f"{name}{i}")
        if sbase is not None:
            a.stamp(sbase + i)
        for j in range(4):
            reads(a, op, (i % NSLOT) * SLOT, j, dst + j * 8, rf)
        k = i + NSLOT
        if k < len(items):
            a("s_waitcnt lgkmcnt(0)")
            op2, st2, _, _ = items[k]
            emit_groups(a, dma_groups(op2, st2, (k % NSLOT) * SLOT, sWB, f"{name}{k}"))
    a("s_waitcnt lgkmcnt(0)")


FX, FY = 32, 48


def stream_gemm(a, sop, stages, slots, mf, name, pre_issued, sbase=None):
    n = len(stages)
    nr = 4 if sop.kind == 'KC' else 8
    nxt = pre_issued

    def R(i, half):
        for jj in range(2):
            j = half * 2 + jj
            reads(a, sop, slots[i] * SLOT, j, (FX if half == 0 else FY) + jj * 8)

    a.vwait(f"{name}0")
    if sbase is not None:
        a.stamp(sbase)
    R(0, 0)
    for i in range(n):
        R(i, 1)
        a(f"s_waitcnt lgkmcnt({nr})")
        for jj in range(2):
            for l in mf(stages[i], jj, FX + jj * 8):
                a(l)
        if i + 1 < n:
            a.vwait(f"{name}{i+1}")
            if sbase is not None:
                a.stamp(sbase + i + 1)
            R(i + 1, 0)
            a(f"s_waitcnt lgkmcnt({nr})")
        else:
            a("s_waitcnt lgkmcnt(0)")
        grps = []
        if nxt < n and slots[nxt] == slots[i]:
            grps = dma_groups(sop, stages[nxt], slots[nxt] * SLOT, sWB, f"{name}{nxt}")
            nxt += 1
        k = 0
        for jj in range(2):
            for l in mf(stages[i], 2 + jj, FY + jj * 8):
                if k < len(grps):
                    emit_groups(a, [grps[k]])
                k += 1
                a(l)
    assert nxt == n


def bf16r(a, dst, src):
    a(f"v_cvt_pk_bf16_f32 v{dst}, v{src}, v{src}")
    a(f"v_lshlrev_b32 v{dst}, 16, v{dst}")


def nonce_issue(a, nv):
    l = a.newlabel("ni")
    a("s_cmp_lg_u32 s3, 0")
    a(f"s_cbranch_scc1 {l}")
    a(f"buffer_load_dwordx2 v[{nv}:{nv+1}], off, s[{SDBG}:{SDBG+3}], 0 sc1")
    a.label(l)


def set_flag(a, base, tag=None, first=None):
    if tag is None:
        a.vwait0()
    elif tag != "done":
        a.vwait(tag)
    a("s_barrier")
    l = a.newlabel("nf")
    a("s_cmp_lg_u32 s3, 0")
    a(f"s_cbranch_scc1 {l}")
    if first:
        lp = a.newlabel("np")
        ld = a.newlabel("npd")
        a(f"s_mov_b32 s{sCNT}, 20000")
        a.label(lp)
        a(f"v_readfirstlane_b32 s{sN}, v{first}")
        a(f"v_readfirstlane_b32 s{sN+1}, v{first+1}")
        a(f"s_cmp_lg_u32 s{sN}, 0")
        a(f"s_cbranch_scc1 {ld}")
        a(f"buffer_load_dwordx2 v[{first}:{first+1}], off, s[{SDBG}:{SDBG+3}], 0 sc1")
        a("s_waitcnt vmcnt(0)")
        a(f"s_sub_u32 s{sCNT}, s{sCNT}, 1")
        a(f"s_cmp_lg_u32 s{sCNT}, 0")
        a(f"s_cbranch_scc1 {lp}")
        a.label(ld)
        srdws(a, SDBG, 'fl')
    a("s_mov_b64 exec, 1")
    a(f"s_lshl_b32 s{sCNT}, s{sFLG}, 5")
    a(f"v_mov_b32 v14, s{sN}")
    a(f"v_mov_b32 v15, s{sN+1}")
    a(f"buffer_store_dwordx2 v[14:15], off, s[{SDBG}:{SDBG+3}], s{sCNT} offset:{base & 0xfff} sc1" if base < 0x1000 else
      f"s_add_u32 s{sCNT}, s{sCNT}, {base}\n    buffer_store_dwordx2 v[14:15], off, s[{SDBG}:{SDBG+3}], s{sCNT} sc1")
    a("s_mov_b64 exec, -1")
    a.label(l)


def touch(a, op, stages, two=False):
    a(f"v_mul_u32_u24 v18, {op.rs}, v1")
    for st in stages:
        a(f"s_add_u32 s{sT}, s{op.scur}, {st * op.adv}")
        a.vm(f"buffer_load_dword v5, v18, s[{op.srds[0]}:{op.srds[0]+3}], s{sT} offen")
        if two:
            a.vm(f"buffer_load_dword v5, v18, s[{op.srds[0]}:{op.srds[0]+3}], s{sT} offen offset:124")


def wait_flags(a, n=1, dv=18):
    l = a.newlabel("poll")
    d = a.newlabel("polld")
    a("s_cmp_lg_u32 s3, 0")
    a(f"s_cbranch_scc1 {d}")
    a(f"s_mov_b32 s{sCNT}, 20000")
    a.label(l)
    for i in range(n):
        a(f"buffer_load_dwordx2 v[{dv+2*i}:{dv+1+2*i}], v{14+i}, s[{SDBG}:{SDBG+3}], 0 offen sc1")
    a("s_waitcnt vmcnt(0)")
    a(f"v_cmp_ne_u64 vcc, s[{sN}:{sN+1}], v[{dv}:{dv+1}]")
    for i in range(1, n):
        a(f"v_cmp_ne_u64 s[48:49], s[{sN}:{sN+1}], v[{dv+2*i}:{dv+1+2*i}]")
        a(f"s_or_b64 vcc, vcc, s[48:49]")
    a(f"s_cbranch_vccz {d}")
    if SLEEP:
        a(f"s_sleep {SLEEP}")
    a(f"s_sub_u32 s{sCNT}, s{sCNT}, 1")
    a(f"s_cmp_lg_u32 s{sCNT}, 0")
    a(f"s_cbranch_scc1 {l}")
    a.label(d)
    a("s_mov_b64 exec, -1")
    a("s_barrier")


def c_share_touch(a):
    a(f"s_and_b32 s{sT0}, s{sR}, 7")
    a(f"s_lshl_b32 s{sT0}, s{sT0}, 1")
    a(f"s_and_b32 s{sT1}, s3, 1")
    a(f"s_add_u32 s{sT0}, s{sT0}, s{sT1}")
    a(f"s_lshl_b32 s{sT0}, s{sT0}, 12")
    a(f"s_lshl_b32 s{sT1}, s{sDT}, 16")
    a(f"s_add_u32 s{sT0}, s{sT0}, s{sT1}")
    a("v_and_b32 v18, 31, v1")
    a("v_lshlrev_b32 v18, 7, v18")
    a.vm(f"buffer_load_dword v5, v18, s[{S5}:{S5+3}], s{sT0} offen")


def w2_share_touch(a):
    a(f"s_lshr_b32 s{sT0}, s{sR}, 3")
    a(f"s_mul_i32 s{sT0}, s{sT0}, 460")
    a(f"s_mul_i32 s{sT1}, s3, 115")
    a(f"s_add_u32 s{sT0}, s{sT0}, s{sT1}")
    a(f"s_lshl_b32 s{sT0}, s{sT0}, 12")
    a(f"s_lshl_b32 s{sT1}, s{sST}, 7")
    a(f"s_add_u32 s{sT0}, s{sT0}, s{sT1}")
    a(f"s_add_u32 s{sT1}, s{sT0}, {64*4096}")
    a("v_lshlrev_b32 v18, 12, v1")
    a.vm(f"buffer_load_dword v5, v18, s[{S6}:{S6+3}], s{sT0} offen")
    a.vm(f"buffer_load_dword v5, v18, s[{S6}:{S6+3}], s{sT1} offen")


def bu_share_touch(a):
    a(f"s_cmp_ge_u32 s{sR}, 24")
    a(f"s_cselect_b32 s{S7}, s{KP['bim']}, s{KP['bre']}")
    a(f"s_cselect_b32 s{S7+1}, s{KP['bim']+1}, s{KP['bre']+1}")
    a(f"s_and_b32 s48, s{sXCD}, 1")
    a(f"s_lshl_b32 s48, s48, 18")
    a(f"s_and_b32 s49, s{sR}, 7")
    a(f"s_mov_b32 s{S7+2}, {SZ['bre']}")
    a(f"s_lshr_b32 s50, s{sXCD}, 1")
    a(f"s_lshl_b32 s50, s50, 19")
    a(f"s_cmp_lt_u32 s{sR}, 16")
    a(f"s_cselect_b32 s{S7}, s{KP['x']}, s{S7}")
    a(f"s_cselect_b32 s{S7+1}, s{KP['x']+1}, s{S7+1}")
    a(f"s_cselect_b32 s{S7+2}, {SZ['x']}, s{S7+2}")
    a(f"s_cselect_b32 s48, s50, s48")
    a(f"s_cselect_b32 s49, s{sR}, s49")
    a(f"s_and_b32 s{S7+1}, s{S7+1}, 0xffff")
    a(f"s_mov_b32 s{S7+3}, 0x00020000")
    a(f"s_lshl_b32 s49, s49, 2")
    a(f"s_add_u32 s49, s49, s3")
    a(f"s_lshl_b32 s49, s49, 13")
    a(f"s_add_u32 s48, s48, s49")
    a("v_lshlrev_b32 v18, 7, v1")
    a.vm(f"buffer_load_dword v5, v18, s[{S7}:{S7+3}], s48 offen")


def cmul_add(a, dr, di, ar, ai, br, bi, cr, ci, t0, t1):
    a(f"v_fma_f32 v{t0}, -v{ai}, v{bi}, v{cr}")
    a(f"v_fma_f32 v{t1}, v{ai}, v{br}, v{ci}")
    a(f"v_fma_f32 v{dr}, v{ar}, v{br}, v{t0}")
    a(f"v_fma_f32 v{di}, v{ar}, v{bi}, v{t1}")


def csq(a, r, i, t0, t1):
    a(f"v_mul_f32 v{t0}, v{i}, v{i}")
    a(f"v_mul_f32 v{t1}, v{r}, v{i}")
    a(f"v_fma_f32 v{r}, v{r}, v{r}, -v{t0}")
    a(f"v_add_f32 v{i}, v{t1}, v{t1}")


def lam_compute(a, raw, base, t):
    lr, li, cr, ci = base, base + 1, base + 2, base + 3
    Lr, Li, dt = raw, raw + 1, raw + 2
    a(f"v_lshlrev_b32 v{Lr}, 16, v{Lr}")
    a(f"v_lshlrev_b32 v{Li}, 16, v{Li}")
    a(f"v_lshlrev_b32 v{dt}, 16, v{dt}")
    a(f"v_mul_f32 v{dt}, 0x3fb8aa3b, v{dt}")
    a(f"v_exp_f32 v{dt}, v{dt}")
    a("s_nop 0")
    bf16r(a, dt, dt)
    a(f"v_mul_f32 v{t}, v{dt}, v{Lr}")
    a(f"v_mul_f32 v{t+1}, v{dt}, v{Li}")
    a(f"v_mul_f32 v{t}, 0x3fb8aa3b, v{t}")
    a(f"v_exp_f32 v{t}, v{t}")
    a(f"v_mul_f32 v{t+1}, 0.15915494, v{t+1}")
    a(f"v_fract_f32 v{t+1}, v{t+1}")
    a(f"v_cos_f32 v{t+2}, v{t+1}")
    a(f"v_sin_f32 v{t+3}, v{t+1}")
    a("s_nop 0")
    a(f"v_mul_f32 v{lr}, v{t}, v{t+2}")
    a(f"v_mul_f32 v{li}, v{t}, v{t+3}")
    a(f"v_add_f32 v{t}, -1.0, v{lr}")
    a(f"v_mul_f32 v{t+1}, v{Lr}, v{Lr}")
    a(f"v_fma_f32 v{t+1}, v{Li}, v{Li}, v{t+1}")
    a(f"v_rcp_f32 v{t+1}, v{t+1}")
    a(f"v_mul_f32 v{t+2}, v{t}, v{Lr}")
    a(f"v_fma_f32 v{t+2}, v{li}, v{Li}, v{t+2}")
    a(f"v_mul_f32 v{t+3}, v{li}, v{Lr}")
    a(f"v_fma_f32 v{t+3}, -v{t}, v{Li}, v{t+3}")
    a(f"v_mul_f32 v{cr}, v{t+2}, v{t+1}")
    a(f"v_mul_f32 v{ci}, v{t+3}, v{t+1}")


def write_partial(a, rf, accbase, ldsoff, first):
    if first:
        a("v_and_b32 v14, 31, v1")
        a("v_mul_u32_u24 v14, 272, v14")
        a("v_lshrrev_b32 v15, 5, v1")
        a("v_lshl_add_u32 v14, v15, 4, v14")
        a(f"v_add_u32 v14, s{sWB}, v14")
        a("s_nop 15")
    for qm in range(2):
        for qn in range(2):
            for j in range(4):
                acc = accbase + (qm * 2 + qn) * 16 + 4 * j
                off = ldsoff + qn * 32 * 272 + (qm * 32 + 8 * j) * 4
                a(f"ds_write_b128 v14, {rf}[{acc}:{acc+3}] offset:{off}")


def read_partials(a, parts):
    a("v_lshrrev_b32 v14, 2, v0")
    a("v_mul_u32_u24 v15, 272, v14")
    a("v_and_b32 v16, 3, v0")
    a("v_lshl_add_u32 v15, v16, 6, v15")
    a(f"v_add_u32 v18, {2*WREG}, v15")
    for off, dst in parts:
        for w in range(4):
            for i in range(4):
                d = dst + w * 16 + i * 4
                a(f"ds_read_b128 v[{d}:{d+3}], v{15 if w < 2 else 18} offset:{(w&1)*WREG+off+i*16}")


def ln_compute(a):
    R = LNR
    XR, GW, GU, XU = 32, 44, 48, 56
    for k in range(4):
        a(f"v_lshlrev_b32 v{GU+2*k}, 16, v{GW+k}")
        a(f"v_and_b32 v{GU+1+2*k}, 0xffff0000, v{GW+k}")
    for r in range(R):
        for k in range(4):
            a(f"v_lshlrev_b32 v{XU+8*r+2*k}, 16, v{XR+4*r+k}")
            a(f"v_and_b32 v{XU+1+8*r+2*k}, 0xffff0000, v{XR+4*r+k}")
    for r in range(R):
        X = XU + 8 * r
        a(f"v_add_f32 v{80+r}, v{X}, v{X+1}")
        for k in range(2, 8):
            a(f"v_add_f32 v{80+r}, v{80+r}, v{X+k}")
        for k in range(4):
            a(f"v_mul_f32 v88, v{X+2*k}, v{GU+2*k}")
            a(f"v_mul_f32 v89, v{X+2*k+1}, v{GU+1+2*k}")
            a(f"v_cvt_pk_bf16_f32 v88, v88, v89")
            a(f"v_lshlrev_b32 v89, 16, v88")
            a(f"v_and_b32 v88, 0xffff0000, v88")
            if k == 0:
                a(f"v_add_f32 v{84+r}, v88, v89")
            else:
                a(f"v_add_f32 v{84+r}, v{84+r}, v88")
                a(f"v_add_f32 v{84+r}, v{84+r}, v89")

    def wave_sum(regs):
        for sh in (8, 4, 2, 1):
            a("s_nop 1")
            for v in regs:
                a(f"v_add_f32_dpp v{v}, v{v}, v{v} row_ror:{sh} row_mask:0xf bank_mask:0xf")
        a("s_nop 1")
        for v in regs:
            for q in range(4):
                a(f"v_readlane_b32 s{48+q}, v{v}, {16*q}")
            a("s_nop 1")
            a(f"v_mov_b32 v{v}, s48")
            for q in range(1, 4):
                a(f"v_add_f32 v{v}, s{48+q}, v{v}")

    wave_sum([80 + r for r in range(R)] + [84 + r for r in range(R)])
    for r in range(R):
        X = XU + 8 * r
        a(f"v_mul_f32 v{80+r}, 0x3b000000, v{80+r}")
        for k in range(8):
            a(f"v_sub_f32 v88, v{X+k}, v{80+r}")
            if k == 0:
                a(f"v_mul_f32 v{92+r}, v88, v88")
            else:
                a(f"v_fma_f32 v{92+r}, v88, v88, v{92+r}")
    wave_sum([92 + r for r in range(R)])
    for r in range(R):
        X = XU + 8 * r
        a(f"v_mul_f32 v{92+r}, 0x3b000000, v{92+r}")
        bf16r(a, 92 + r, 92 + r)
        a(f"v_add_f32 v{92+r}, 0x3727c5ac, v{92+r}")
        bf16r(a, 92 + r, 92 + r)
        a(f"v_sqrt_f32 v{92+r}, v{92+r}")
        a("s_nop 0")
        bf16r(a, 92 + r, 92 + r)
        a(f"v_rcp_f32 v{92+r}, v{92+r}")
        bf16r(a, 80 + r, 80 + r)
        for k in range(4):
            a(f"v_sub_f32 v88, v{X+2*k}, v{80+r}")
            a(f"v_sub_f32 v89, v{X+2*k+1}, v{80+r}")
            a(f"v_cvt_pk_bf16_f32 v88, v88, v89")
            a(f"v_lshlrev_b32 v89, 16, v88")
            a(f"v_and_b32 v88, 0xffff0000, v88")
            a(f"v_mul_f32 v89, v89, v{92+r}")
            a(f"v_mul_f32 v88, v88, v{92+r}")
            a(f"v_cvt_pk_bf16_f32 v{96+4*r+k}, v89, v88")
        a(f"s_add_u32 s{sT1}, s{sT0}, {r*1024}")
        a.vm(f"buffer_store_dwordx4 v[{96+4*r}:{99+4*r}], v30, s[{S2}:{S2+3}], s{sT1} offen sc1")
        bf16r(a, 84 + r, 84 + r)
        a(f"v_mul_f32 v{84+r}, 0xbfb8aa3b, v{84+r}")
        a(f"v_exp_f32 v{84+r}, v{84+r}")
        a("s_nop 0")
        a(f"v_add_f32 v{84+r}, 1.0, v{84+r}")
        a(f"v_rcp_f32 v{84+r}, v{84+r}")
        a("s_nop 0")
        bf16r(a, 84 + r, 84 + r)
    a("v_mov_b32 v88, v84")
    for r in range(1, R):
        a(f"v_cmp_eq_u32 vcc, {r}, v1")
        a("s_nop 1")
        a(f"v_cndmask_b32 v88, v88, v{84+r}, vcc")
    a("v_lshlrev_b32 v89, 2, v1")
    a(f"s_lshl_b32 s{sT1}, s{sT2}, 7")
    a(f"s_mov_b64 exec, {(1 << R) - 1}")
    a.vm(f"buffer_store_dword v88, v89, s[{S3}:{S3+3}], s{sT1} offen sc1")
    a("s_mov_b64 exec, -1")


def make_c_op(a):
    a("s_cmp_ge_u32 s3, 2")
    a(f"s_cselect_b32 s{S5}, s{KP['cim']}, s{KP['cre']}")
    a(f"s_cselect_b32 s{S5+1}, s{KP['cim']+1}, s{KP['cre']+1}")
    a(f"s_and_b32 s{S5+1}, s{S5+1}, 0xffff")
    a(f"s_mov_b32 s{S5+2}, {SZ['cre']}")
    a(f"s_mov_b32 s{S5+3}, 0x00020000")
    a(f"s_and_b32 s{sC1}, s3, 1")
    a(f"s_lshl_b32 s{sC1}, s{sC1}, 9")
    a(f"s_lshl_b32 s{sT0}, s{sDT}, 16")
    a(f"s_add_u32 s{sC1}, s{sC1}, s{sT0}")
    op = Op('KC', [S5] * 8, 1024, sC1, 2, 6)
    setup_dma(a, op)
    setup_frag(a, op, sWB)
    return op


def c_items(op):
    return [(op, st, 'v', 128 + st * 32) for st in range(4)]


def mix_start(a, sdst):
    a(f"s_mul_i32 s{sdst}, s3, 6")
    a("s_cmp_eq_u32 s3, 3")
    a(f"s_cselect_b32 s{sdst}, 17, s{sdst}")


def make_w2_op(a, setup_km_frag):
    srd(a, S6, 'w2')
    mix_start(a, sC2)
    a(f"s_lshl_b32 s{sC2}, s{sC2}, 18")
    a(f"s_lshl_b32 s{sT0}, s{sST}, 7")
    a(f"s_add_u32 s{sC2}, s{sC2}, s{sT0}")
    op = Op('KM', [S6] * 8, 4096, sC2, 4, 10)
    if setup_km_frag:
        setup_frag(a, op, sWB)
    return op


def w2_issue(a, op, name):
    setup_dma(a, op)
    l1 = a.newlabel("w2a")
    a("s_cmp_ge_u32 s3, 2")
    a(f"s_cbranch_scc1 {l1}")
    emit_groups(a, dma_groups(op, 5, 4 * SLOT, sWB, name + "o"))
    a.label(l1)
    for st in range(4):
        emit_groups(a, dma_groups(op, st, st * SLOT, sWB, f"{name}{st}"))


def w2_drain(a, op, name, extra):
    l2 = a.newlabel("w2b")
    a("s_cmp_ge_u32 s3, 2")
    a(f"s_cbranch_scc1 {l2}")
    if name + "o" in a.vmq:
        a.vwait(name + "o")
    for j in range(4):
        reads(a, op, 4 * SLOT, j, 5 * 32 + j * 8, 'a')
    a("s_waitcnt lgkmcnt(0)")
    a.label(l2)
    for st in range(4):
        if f"{name}{st}" not in a.vmq:
            a.vmq.insert(st, f"{name}{st}")
    items = [(op, st, 'a', st * 32) for st in range(5)] + extra
    preload(a, items, 4, name, 48)


def kernel(a):
    name = NAME + "_kernel"
    a.raw(f".globl {name}")
    a.raw(".p2align 8")
    a.raw(f".type {name},@function")
    a.label(name)
    a("s_cmp_ge_u32 s2, 256")
    a("s_cbranch_scc1 L_end")
    a("s_load_dwordx16 s[64:79], s[0:1], 0")
    a("s_load_dwordx16 s[80:95], s[0:1], 64")
    a("s_load_dwordx4 s[96:99], s[0:1], 128")
    a("v_and_b32 v1, 63, v0")
    a("v_lshrrev_b32 v2, 6, v0")
    if STAMPS:
        a("v_mov_b32 v31, 0")
    a(f"s_and_b32 s{sXCD}, s2, 7")
    a(f"s_lshr_b32 s{sR}, s2, 3")
    a("v_readfirstlane_b32 s3, v2")
    a(f"s_lshr_b32 s{sST}, s{sXCD}, 1")
    a(f"s_lshl_b32 s{sST}, s{sST}, 3")
    a(f"s_and_b32 s{sT0}, s{sR}, 7")
    a(f"s_add_u32 s{sST}, s{sST}, s{sT0}")
    a(f"s_and_b32 s{sDT}, s{sXCD}, 1")
    a(f"s_lshl_b32 s{sDT}, s{sDT}, 2")
    a(f"s_lshr_b32 s{sT0}, s{sR}, 3")
    a(f"s_add_u32 s{sDT}, s{sDT}, s{sT0}")
    a(f"s_mul_i32 s{sWB}, s3, {WREG}")
    a("s_waitcnt lgkmcnt(0)")
    a.stamp(0)
    a.cstamp(62)
    srd(a, SDBG, 'dbg')
    a("s_lshl_b32 s48, s2, 2")
    a("s_add_u32 s48, s48, s3")
    a("s_cmp_lg_u32 s48, 0")
    a("s_cbranch_scc1 L_nonw")
    a(f"s_memrealtime s[{sN}:{sN+1}]")
    a("s_mov_b64 exec, 1")
    a("s_waitcnt lgkmcnt(0)")
    a(f"s_or_b32 s{sN}, s{sN}, 1")
    a(f"v_mov_b32 v14, s{sN}")
    a(f"v_mov_b32 v15, s{sN+1}")
    a(f"buffer_store_dwordx2 v[14:15], off, s[{SDBG}:{SDBG+3}], 0 sc1")
    a("s_mov_b64 exec, -1")
    a.label("L_nonw")
    a("s_cmp_ge_u32 s2, 192")
    a("s_cbranch_scc1 L_apath")

    srd(a, S0, 'x')
    srd(a, S1, 'gw')
    a(f"s_lshl_b32 s{sT2}, s2, 2")
    a(f"s_add_u32 s{sT2}, s{sT2}, s3")
    a(f"s_mul_i32 s{sT0}, s{sT2}, {LNR*1024}")
    a("v_lshlrev_b32 v30, 4, v1")
    for r in range(LNR):
        a(f"s_add_u32 s{sT1}, s{sT0}, {r*1024}")
        a.vm(f"buffer_load_dwordx4 v[{32+4*r}:{35+4*r}], v30, s[{S0}:{S0+3}], s{sT1} offen", "lnx")
    a.vm(f"buffer_load_dwordx4 v[44:47], v30, s[{S1}:{S1+3}], 0 offen", "lnx")
    bu_share_touch(a)
    srdws(a, S2, 'hln')
    srdws(a, S3, 'g')
    a(f"s_lshr_b32 s{sA}, s{sR}, 3")
    a(f"s_lshl_b32 s{sA}, s{sA}, 3")
    a(f"s_add_u32 s{sA}, s{sA}, s{sXCD}")
    a(f"s_and_b32 s{sB}, s{sR}, 7")
    a(f"s_mov_b32 s{sFLG}, s2")
    srd(a, S4, 'w1')
    a(f"s_mul_i32 s{sC0}, s3, {512*2752}")
    a(f"s_lshl_b32 s{sT1}, s{sA}, 7")
    a(f"s_add_u32 s{sC0}, s{sC0}, s{sT1}")
    opW1 = Op('KM', [S4] * 8, 2752, sC0, 4, 10)
    setup_dma(a, opW1)
    a(f"s_cmp_ge_u32 s{sA}, 22")
    a("s_cbranch_scc1 L_lpre")
    a(f"s_lshl_b32 s{sT3}, s{sB}, 2")
    a(f"s_add_u32 s{sT3}, s{sT3}, s3")
    a(f"s_mul_i32 s{sT3}, s{sT3}, {64*2752}")
    a(f"s_add_u32 s{sT3}, s{sT3}, s{sT1}")
    a("v_mul_u32_u24 v18, 2752, v1")
    a.vm(f"buffer_load_dword v5, v18, s[{S4}:{S4+3}], s{sT3} offen")
    a.vm(f"buffer_load_dword v5, v18, s[{S4}:{S4+3}], s{sT3} offen offset:124")
    a("s_waitcnt vmcnt(3)")
    a("s_branch L_ln")
    a.label("L_lpre")
    a("s_waitcnt vmcnt(1)")
    a.label("L_ln")
    nonce_issue(a, 28)
    ln_compute(a)
    a(f"s_cmp_ge_u32 s{sA}, 22")
    a("s_cbranch_scc1 L_lpre2")
    for i in range(NSLOT):
        emit_groups(a, dma_groups(opW1, i, i * SLOT, sWB, f"g{i}"))
    setup_frag(a, opW1, sWB)
    a("s_waitcnt vmcnt(40)")
    a("s_branch L_ln2")
    a.label("L_lpre2")
    setup_frag(a, opW1, sWB)
    a("s_waitcnt vmcnt(0)")
    a.label("L_ln2")
    set_flag(a, FL_LN, "done", 28)
    a.stamp(1)
    a(f"s_cmp_ge_u32 s{sA}, 22")
    a("s_cbranch_scc1 L_lpath")

    a.vmq = [f"g{i}" for i in range(NSLOT) for _ in range(8)]
    a(f"s_lshl_b32 s{sFLG}, s{sB}, 5")
    a(f"s_add_u32 s{sFLG}, s{sFLG}, s{sA}")
    opC = make_c_op(a)
    opW2 = make_w2_op(a, False)
    items = [(opW1, st, 'a', st * 32) for st in range(8)]
    preload(a, items, NSLOT, "g", 36)
    w2_share_touch(a)
    c_share_touch(a)
    srd(a, S1, 'b1')
    a("v_and_b32 v19, 3, v0")
    a("v_lshlrev_b32 v19, 5, v19")
    a(f"s_lshl_b32 s{sT1}, s{sA}, 7")
    a.vm(f"buffer_load_dwordx4 v[20:23], v19, s[{S1}:{S1+3}], s{sT1} offen")
    a.vm(f"buffer_load_dwordx4 v[24:27], v19, s[{S1}:{S1+3}], s{sT1} offen offset:16")
    srdws(a, S3, 'u')
    a(f"s_lshl_b32 s{sC0}, s3, 19")
    a(f"s_lshl_b32 s{sT1}, s{sB}, 7")
    a(f"s_add_u32 s{sC0}, s{sC0}, s{sT1}")
    opH = Op('KM', [S2] * 8, 1024, sC0, 4, 10)
    setup_dma(a, opH)
    a.stamp(2)
    a("v_lshlrev_b32 v14, 5, v1")
    a("v_add_u32 v15, 2048, v14")
    a("v_add_u32 v16, 4096, v14")
    wait_flags(a, 3, 32)
    a.stamp(3)
    for i in range(NSLOT):
        emit_groups(a, dma_groups(opH, i, i * SLOT, sWB, f"h{i}"))

    def mf1(st, j, fr):
        r = []
        for qm in range(2):
            for qn in range(2):
                acc = 64 + (qm * 2 + qn) * 16
                A = st * 32 + j * 8 + qm * 4
                B = fr + qn * 4
                c = "0" if (st == 0 and j == 0) else f"v[{acc}:{acc+15}]"
                r.append(f"v_mfma_f32_32x32x16_bf16 v[{acc}:{acc+15}], a[{A}:{A+3}], v[{B}:{B+3}], {c}")
        return r
    stream_gemm(a, opH, list(range(8)), [i % NSLOT for i in range(8)], mf1, "h", NSLOT, 16)
    a.stamp(4)
    write_partial(a, 'v', 64, 0, True)
    a("s_waitcnt lgkmcnt(0)")
    a("s_barrier")
    read_partials(a, [(0, 64)])
    a("s_waitcnt lgkmcnt(0)")
    a("s_barrier")
    for i in range(16):
        a(f"v_add_f32 v{64+i}, v{64+i}, v{80+i}")
        a(f"v_add_f32 v{96+i}, v{96+i}, v{112+i}")
    for i in range(16):
        a(f"v_add_f32 v{64+i}, v{64+i}, v{96+i}")
    for k in range(8):
        a(f"v_cvt_pk_bf16_f32 v80, v{64+2*k}, v{65+2*k}")
        a(f"v_lshlrev_b32 v81, 16, v80")
        a(f"v_and_b32 v80, 0xffff0000, v80")
        a(f"v_lshlrev_b32 v82, 16, v{20+k}")
        a(f"v_and_b32 v83, 0xffff0000, v{20+k}")
        a(f"v_add_f32 v81, v81, v82")
        a(f"v_add_f32 v80, v80, v83")
        a(f"v_cvt_pk_bf16_f32 v80, v81, v80")
        a(f"v_lshlrev_b32 v{64+2*k}, 16, v80")
        a(f"v_and_b32 v{65+2*k}, 0xffff0000, v80")
    c1 = -2 * 0.7978845608028654 * 1.4426950408889634
    c2 = c1 * 0.044715
    a(f"s_mov_b32 s{sT0}, {f2u(c1):#x}")
    a(f"s_mov_b32 s{sT1}, {f2u(c2):#x}")
    a(f"v_mov_b32 v100, s{sT0}")
    for i in range(16):
        a(f"v_mul_f32 v{80+i}, v{64+i}, v{64+i}")
        a(f"v_fma_f32 v{80+i}, v{80+i}, s{sT1}, v100")
        a(f"v_mul_f32 v{80+i}, v{80+i}, v{64+i}")
        a(f"v_exp_f32 v{80+i}, v{80+i}")
    for i in range(16):
        a(f"v_add_f32 v{80+i}, 1.0, v{80+i}")
        a(f"v_rcp_f32 v{80+i}, v{80+i}")
    a("s_nop 0")
    for i in range(16):
        a(f"v_mul_f32 v{64+i}, v{64+i}, v{80+i}")
    for k in range(8):
        a(f"v_cvt_pk_bf16_f32 v{80+k}, v{64+2*k}, v{65+2*k}")
    a(f"s_lshl_b32 s{sT0}, s{sA}, 6")
    a(f"v_lshl_add_u32 v17, v16, 4, s{sT0}")
    a("v_cmp_gt_u32 vcc, 1376, v17")
    a("s_nop 1")
    for k in range(8):
        a(f"v_cndmask_b32 v{80+k}, 0, v{80+k}, vcc")
    a(f"s_lshl_b32 s{sT0}, s{sB}, 6")
    a(f"v_add_u32 v14, s{sT0}, v14")
    a(f"v_mul_u32_u24 v14, {URS}, v14")
    a("v_lshl_add_u32 v14, v17, 1, v14")
    a.vm(f"buffer_store_dwordx4 v[80:83], v14, s[{S3}:{S3+3}], 0 offen sc1")
    a.vm(f"buffer_store_dwordx4 v[84:87], v14, s[{S3}:{S3+3}], 0 offen offset:16 sc1")
    w2_issue(a, opW2, "w")
    a("s_waitcnt vmcnt(32)")
    set_flag(a, FL_U, "done")
    a.stamp(5)
    w2_drain(a, opW2, "w", c_items(opC))
    a.stamp(6)
    a("s_branch L_p3")

    a.label("L_lpath")
    a.vmq = []
    opC = make_c_op(a)
    opW2 = make_w2_op(a, False)
    w2_share_touch(a)
    c_share_touch(a)
    w2_issue(a, opW2, "lw")
    w2_drain(a, opW2, "lw", c_items(opC))
    a.stamp(6)
    a("s_branch L_p3")

    a.label("L_apath")
    a.vmq = []
    srd(a, S0, 'x')
    srd(a, S1, 'bre')
    srd(a, S2, 'bim')
    a(f"s_lshr_b32 s{sA}, s{sXCD}, 1")
    a(f"s_lshl_b32 s{sA}, s{sA}, 2")
    a(f"s_and_b32 s{sT0}, s{sR}, 3")
    a(f"s_add_u32 s{sA}, s{sA}, s{sT0}")
    a(f"s_and_b32 s{sB}, s{sXCD}, 1")
    a(f"s_lshl_b32 s{sB}, s{sB}, 1")
    a(f"s_lshr_b32 s{sT0}, s{sR}, 2")
    a(f"s_and_b32 s{sT0}, s{sT0}, 1")
    a(f"s_add_u32 s{sB}, s{sB}, s{sT0}")
    a(f"s_lshl_b32 s{sFLG}, s{sB}, 4")
    a(f"s_add_u32 s{sFLG}, s{sFLG}, s{sA}")
    a(f"s_lshl_b32 s{sT0}, s3, 15")
    a(f"s_lshl_b32 s{sC0}, s{sA}, 17")
    a(f"s_add_u32 s{sC0}, s{sC0}, s{sT0}")
    a(f"s_lshl_b32 s{sC1}, s{sB}, 17")
    a(f"s_add_u32 s{sC1}, s{sC1}, s{sT0}")
    a(f"s_lshl_b32 s{sC2}, s3, 12")
    a(f"s_mul_i32 s{sC3}, s3, 24576")
    a(f"s_add_u32 s{sC3}, s{sC3}, 49152")
    opA = Op('KC', [S0] * 8, 1024, sC0, 2, 6, perm=True)
    opB = Op('KC', [S1] * 4 + [S2] * 4, 1024, sC1, 2, 10)
    opB.rowoff = [(i & 3) * 8 * 1024 for i in range(8)]
    setup_dma(a, opA)

    def bu_dma(st):
        s = st % 3
        return (dma_groups(opA, st, s * 16384, sC2, f"b{st}", rng=range(4)) +
                dma_groups(opB, st, s * 8192, sC3, f"b{st}"))
    bu_share_touch(a)
    emit_groups(a, bu_dma(0))
    emit_groups(a, bu_dma(1))
    srd(a, S3, 'lre')
    srd(a, S4, 'lim')
    srd(a, S5, 'ldt')
    a("v_and_b32 v30, 31, v1")
    a(f"s_lshl_b32 s{sT0}, s{sB}, 7")
    a(f"s_lshl_b32 s{sT1}, s3, 5")
    a(f"s_add_u32 s{sT0}, s{sT0}, s{sT1}")
    a(f"v_add_u32 v30, s{sT0}, v30")
    a("v_lshlrev_b32 v29, 1, v30")
    a.vm(f"buffer_load_ushort v26, v29, s[{S3}:{S3+3}], 0 offen", "lam")
    a.vm(f"buffer_load_ushort v27, v29, s[{S4}:{S4+3}], 0 offen", "lam")
    a.vm(f"buffer_load_ushort v28, v29, s[{S5}:{S5+3}], 0 offen", "lam")
    setup_frag(a, opA, None)
    setup_frag(a, opB, sC3)
    FRG = [192, 216, 240, 40]

    def freg(j, part):
        if j == 2:
            return [240, 248, 32][part]
        return FRG[j] + part * 8

    def bu_R(st, half):
        s = st % 3
        for jj in range(2):
            j = half * 2 + jj
            reads(a, opA, s * 16384, j, freg(j, 0))
            reads(a, opA, s * 16384 + 8192, j, freg(j, 1))
            reads(a, opB, s * 8192, j, freg(j, 2))

    def bu_M(st, j):
        r = []
        for tl in range(2):
            for qm in range(2):
                for qn in range(2):
                    acc = 64 + tl * 64 + (qm * 2 + qn) * 16
                    A = freg(j, tl) + qm * 4
                    B = freg(j, 2) + qn * 4
                    c = "0" if (st == 0 and j == 0) else f"v[{acc}:{acc+15}]"
                    r.append(f"v_mfma_f32_32x32x16_bf16 v[{acc}:{acc+15}], v[{A}:{A+3}], v[{B}:{B+3}], {c}")
        return r
    a.vwait("b0")
    a("s_barrier")
    emit_groups(a, bu_dma(2))
    bu_R(0, 0)
    for st in range(8):
        bu_R(st, 1)
        a("s_waitcnt lgkmcnt(12)")
        for j in range(2):
            for l in bu_M(st, j):
                a(l)
        grps = []
        if st + 1 < 8:
            a.vwait(f"b{st+1}")
            a.stamp(16 + st)
            a("s_waitcnt lgkmcnt(0)")
            a("s_barrier")
            bu_R(st + 1, 0)
            if st + 3 < 8:
                grps = bu_dma(st + 3)
        else:
            a("s_waitcnt lgkmcnt(0)")
        k = 0
        for j in range(2, 4):
            for l in bu_M(st, j):
                if k < len(grps):
                    emit_groups(a, [grps[k]])
                k += 1
                a(l)
    a.stamp(1)
    a.vwait0()
    nonce_issue(a, 52)
    lam_compute(a, 26, 20, 14)
    a("v_mov_b32 v24, v20")
    a("v_mov_b32 v25, v21")
    for _ in range(5):
        csq(a, 24, 25, 14, 15)
    for tl in range(2):
        a(f"v_mov_b32 v{32+4*tl}, 0")
        a(f"v_mov_b32 v{33+4*tl}, 0")
    for t in range(32):
        qm, i = t >> 4, t & 15
        for tl in range(2):
            xr = 64 + tl * 64 + (qm * 2 + 0) * 16 + i
            xi = 64 + tl * 64 + (qm * 2 + 1) * 16 + i
            e = 32 + 4 * tl
            cmul_add(a, e, e + 1, 20, 21, e, e + 1, xr, xi, 14 + 2 * tl, 15 + 2 * tl)
    for tl in range(2):
        for c in range(2):
            a(f"v_mov_b32 v{34+4*tl+c}, v{32+4*tl+c}")
    a("s_nop 1")
    for tl in range(2):
        for c in range(2):
            a(f"v_permlane32_swap_b32 v{32+4*tl+c}, v{34+4*tl+c}")
    a("s_nop 1")
    cmul_add(a, 40, 41, 24, 25, 32, 33, 34, 35, 14, 15)
    cmul_add(a, 40, 41, 24, 25, 40, 41, 36, 37, 14, 15)
    cmul_add(a, 40, 41, 24, 25, 40, 41, 38, 39, 14, 15)
    srdws(a, S3, 'e')
    a("v_lshlrev_b32 v29, 3, v30")
    a(f"s_lshl_b32 s{sT0}, s{sA}, 12")
    a("s_mov_b32 exec_hi, 0")
    a.vm(f"buffer_store_dwordx2 v[40:41], v29, s[{S3}:{S3+3}], s{sT0} offen sc1")
    a("s_mov_b64 exec, -1")
    set_flag(a, FL_E, None, 52)
    a.stamp(2)
    opC = make_c_op(a)
    opW2 = make_w2_op(a, True)
    c_share_touch(a)
    a.stamp(3)
    a("v_mov_b32 v42, 0")
    a("v_mov_b32 v43, 0")
    a(f"s_cmp_eq_u32 s{sA}, 0")
    a("s_cbranch_scc1 L_a_nocarry")
    a(f"s_lshl_b32 s{sT0}, s{sB}, 9")
    a(f"s_add_u32 s{sT0}, s{sT0}, {FL_E}")
    a(f"v_lshl_add_u32 v14, v1, 5, s{sT0}")
    a(f"s_lshl_b32 s{sT2}, 1, s{sA}")
    a(f"s_sub_u32 exec_lo, s{sT2}, 1")
    a(f"s_mov_b32 exec_hi, 0")
    wait_flags(a)
    for j in range(15):
        a(f"s_mov_b32 s{sT0}, {j*4096}")
        a(f"buffer_load_dwordx2 v[{192+2*j}:{193+2*j}], v29, s[{S3}:{S3+3}], s{sT0} offen sc1")
    a("v_mov_b32 v44, v24")
    a("v_mov_b32 v45, v25")
    csq(a, 44, 45, 14, 15)
    csq(a, 44, 45, 14, 15)
    a("s_waitcnt vmcnt(0)")
    for j in range(15):
        a(f"s_cmp_le_u32 s{sA}, {j}")
        a("s_cbranch_scc1 L_a_nocarry")
        cmul_add(a, 42, 43, 44, 45, 42, 43, 192 + 2 * j, 193 + 2 * j, 14, 15)
    a.label("L_a_nocarry")
    a.stamp(4)
    cmul_add(a, 46, 47, 24, 25, 42, 43, 32, 33, 14, 15)
    cmul_add(a, 48, 49, 24, 25, 46, 47, 34, 35, 14, 15)
    cmul_add(a, 50, 51, 24, 25, 48, 49, 36, 37, 14, 15)
    a("v_cmp_lt_u32 vcc, 31, v1")
    a("s_nop 1")
    a("v_cndmask_b32 v32, v42, v46, vcc")
    a("v_cndmask_b32 v33, v43, v47, vcc")
    a("v_cndmask_b32 v36, v48, v50, vcc")
    a("v_cndmask_b32 v37, v49, v51, vcc")
    a("v_lshrrev_b32 v14, 5, v1")
    a("v_and_b32 v15, 31, v1")
    a("v_lshlrev_b32 v15, 1, v15")
    a(f"s_lshl_b32 s{sT0}, s3, 6")
    a(f"v_add_u32 v15, s{sT0}, v15")
    a("v_lshlrev_b32 v16, 6, v14")
    a("v_xor_b32 v15, v15, v16")
    a("v_lshl_add_u32 v29, v14, 14, v15")
    for t in range(32):
        qm, i = t >> 4, t & 15
        for tl in range(2):
            xr = 64 + tl * 64 + (qm * 2 + 0) * 16 + i
            xi = 64 + tl * 64 + (qm * 2 + 1) * 16 + i
            e = 32 + 4 * tl
            t0, t1 = 14 + 2 * tl, 15 + 2 * tl
            pk = 40 + ((t * 2 + tl) & 7)
            cmul_add(a, e, e + 1, 20, 21, e, e + 1, xr, xi, t0, t1)
            a(f"v_mul_f32 v{t0}, v22, v{e}")
            a(f"v_mul_f32 v{t1}, -v22, v{e+1}")
            a(f"v_fma_f32 v{t0}, -v23, v{e+1}, v{t0}")
            a(f"v_fma_f32 v{t1}, -v23, v{e}, v{t1}")
            a(f"v_cvt_pk_bf16_f32 v{pk}, v{t0}, v{t1}")
            off = (tl * 64 + t) * 512
            a(f"ds_write_b16 v29, v{pk} offset:{off}")
            a(f"ds_write_b16_d16_hi v29, v{pk} offset:{off+256}")
    a("s_waitcnt lgkmcnt(0)")
    a("s_barrier")
    srdws(a, S4, 'h')
    a("v_lshrrev_b32 v14, 5, v1")
    a(f"s_lshl_b32 s{sT0}, s3, 5")
    a(f"v_add_u32 v14, s{sT0}, v14")
    a("v_and_b32 v15, 31, v1")
    a("v_lshlrev_b32 v16, 4, v15")
    a(f"s_and_b32 s{sT0}, s3, 1")
    a(f"s_lshl_b32 s{sT0}, s{sT0}, 6")
    a(f"v_xor_b32 v16, s{sT0}, v16")
    a("v_lshl_add_u32 v16, v14, 9, v16")
    a("v_lshrrev_b32 v17, 4, v15")
    a("v_lshlrev_b32 v17, 10, v17")
    a("v_and_b32 v15, 15, v15")
    a("v_lshl_add_u32 v17, v15, 4, v17")
    a("v_lshl_add_u32 v17, v14, 11, v17")
    a(f"s_lshl_b32 s{sT0}, s{sA}, 18")
    a(f"s_lshl_b32 s{sT1}, s{sB}, 8")
    a(f"s_add_u32 s{sT0}, s{sT0}, s{sT1}")
    for i in range(16):
        a(f"ds_read_b128 v[{64+4*i}:{67+4*i}], v16 offset:{i*1024}")
    for i in range(16):
        a(f"s_waitcnt lgkmcnt({15-i})")
        a(f"s_add_u32 s{sT1}, s{sT0}, {i*4096}")
        a.vm(f"buffer_store_dwordx4 v[{64+4*i}:{67+4*i}], v17, s[{S4}:{S4+3}], s{sT1} offen sc1", "hst")
    a("s_barrier")
    l1 = a.newlabel("hw")
    w2_issue(a, opW2, "aw")
    a("s_waitcnt vmcnt(32)")
    a(f"s_lshl_b32 s{sFLG}, s{sA}, 2")
    a(f"s_add_u32 s{sFLG}, s{sFLG}, s{sB}")
    set_flag(a, FL_H, "hst")
    a.stamp(5)
    w2_drain(a, opW2, "aw", c_items(opC))
    a.stamp(6)

    a.label("L_p3")
    a.vmq = []
    srdws(a, S0, 'h')
    srdws(a, S1, 'u')
    a(f"s_lshl_b32 s{sC0}, s{sST}, 17")
    a(f"s_lshl_b32 s{sT0}, s3, 9")
    a(f"s_add_u32 s{sC0}, s{sC0}, s{sT0}")
    mix_start(a, sC1)
    a(f"s_lshl_b32 s{sC1}, s{sC1}, 7")
    a(f"s_mul_i32 s{sT0}, s{sDT}, {64*URS}")
    a(f"s_add_u32 s{sC1}, s{sC1}, s{sT0}")
    opHs = Op('KC', [S0] * 8, 2048, sC0, 2, 6)
    opU = Op('KC', [S1] * 8, URS, sC1, 12, 6)
    setup_dma(a, opHs)
    setup_dma(a, opU)
    for r in range(64, 128):
        a(f"v_mov_b32 v{r}, 0")

    def epi_loads():
        srd(a, S2, 'x')
        srd(a, S3, 'dsk')
        srd(a, S4, 'b2')
        srdws(a, S5, 'g')
        srd(a, S6, 'out')
        a("v_lshrrev_b32 v20, 2, v0")
        a(f"s_lshl_b32 s{sT0}, s{sST}, 6")
        a(f"v_add_u32 v20, s{sT0}, v20")
        a("v_and_b32 v21, 3, v0")
        a("v_lshlrev_b32 v21, 4, v21")
        a(f"s_lshl_b32 s{sT0}, s{sDT}, 6")
        a(f"v_add_u32 v21, s{sT0}, v21")
        a("v_lshl_add_u32 v22, v20, 9, v21")
        a("v_lshlrev_b32 v23, 1, v22")
        a.vm(f"buffer_load_dwordx4 v[192:195], v23, s[{S2}:{S2+3}], 0 offen")
        a.vm(f"buffer_load_dwordx4 v[196:199], v23, s[{S2}:{S2+3}], 0 offen offset:16")
        a("v_lshlrev_b32 v23, 1, v21")
        a.vm(f"buffer_load_dwordx4 v[200:203], v23, s[{S3}:{S3+3}], 0 offen")
        a.vm(f"buffer_load_dwordx4 v[204:207], v23, s[{S3}:{S3+3}], 0 offen offset:16")
        a("v_lshlrev_b32 v23, 1, v20")
        a.vm(f"buffer_load_ushort v208, v23, s[{S4}:{S4+3}], 0 offen")
        a("v_mul_u32_u24 v23, 0xaaab, v20")
        a("v_lshrrev_b32 v23, 17, v23")
        a("v_mul_u32_u24 v24, 3, v23")
        a("v_sub_u32 v24, v20, v24")
        a("v_lshlrev_b32 v24, 2, v24")
        a("v_lshl_add_u32 v23, v23, 7, v24")
        a.vm(f"buffer_load_dword v209, v23, s[{S5}:{S5+3}], 0 offen sc1")

    def ssm_part():
        a(f"s_lshr_b32 s{sT0}, s{sST}, 1")
        a(f"s_lshl_b32 s{sT0}, s{sT0}, 7")
        a(f"s_add_u32 s{sT0}, s{sT0}, {FL_H}")
        a(f"v_lshl_add_u32 v14, v1, 5, s{sT0}")
        a("s_mov_b64 exec, 15")
        wait_flags(a)
        a.stamp(7)
        for i in range(4):
            emit_groups(a, dma_groups(opHs, i, i * SLOT, sWB, f"s{i}"))

        def mf(st, j, fr):
            r = []
            for qm in range(2):
                for qn in range(2):
                    acc = 192 + (qm * 2 + qn) * 16
                    A = 128 + st * 32 + j * 8 + qm * 4
                    B = fr + qn * 4
                    c = "0" if (st == 0 and j == 0) else f"a[{acc}:{acc+15}]"
                    r.append(f"v_mfma_f32_32x32x16_bf16 a[{acc}:{acc+15}], v[{A}:{A+3}], v[{B}:{B+3}], {c}")
            return r
        stream_gemm(a, opHs, list(range(4)), list(range(4)), mf, "s", 4, 24)
        a.stamp(8)

    def mix_part():
        a(f"s_lshl_b32 s{sT0}, s{sDT}, 10")
        a(f"s_add_u32 s{sT0}, s{sT0}, {FL_U}")
        a(f"v_lshl_add_u32 v14, v1, 5, s{sT0}")
        a(f"s_mov_b64 exec, {(1 << 22) - 1:#x}")
        wait_flags(a)
        a.stamp(9)

        def mf(st, j, fr):
            r = []
            for qm in range(2):
                for qn in range(2):
                    acc = 64 + (qm * 2 + qn) * 16
                    A = fr + qm * 4
                    B = st * 32 + j * 8 + qn * 4
                    r.append(f"v_mfma_f32_32x32x16_bf16 v[{acc}:{acc+15}], v[{A}:{A+3}], a[{B}:{B+3}], v[{acc}:{acc+15}]")
            return r
        l1 = a.newlabel("mxa")
        a("s_cmp_ge_u32 s3, 2")
        a(f"s_cbranch_scc1 {l1}")
        emit_groups(a, dma_groups(opU, 5, 4 * SLOT, sWB, "uo"))
        a.label(l1)
        for i in range(4):
            emit_groups(a, dma_groups(opU, i, i * SLOT, sWB, f"u{i}"))
        if SSM_FIRST:
            epi_loads()
        l2 = a.newlabel("mxb")
        a("s_cmp_ge_u32 s3, 2")
        a(f"s_cbranch_scc1 {l2}")
        a.vwait("uo")
        for j in range(4):
            reads(a, opU, 4 * SLOT, j, FX + j * 8)
        a("s_waitcnt lgkmcnt(0)")
        for j in range(4):
            for l in mf(5, j, FX + j * 8):
                a(l)
        a.label(l2)
        emit_groups(a, dma_groups(opU, 4, 4 * SLOT, sWB, "u4"))
        stream_gemm(a, opU, list(range(5)), list(range(5)), mf, "u", 5, 28)
        a.stamp(10)

    if SSM_FIRST:
        ssm_part()
        mix_part()
    else:
        mix_part()
        ssm_part()
    if not SSM_FIRST:
        epi_loads()
    write_partial(a, 'v', 64, 0, True)
    write_partial(a, 'a', 192, PSTR, False)
    a("s_waitcnt lgkmcnt(0)")
    a("s_barrier")
    read_partials(a, [(0, 64), (PSTR, 128)])
    a("s_waitcnt lgkmcnt(15)")
    for i in range(16):
        a(f"v_add_f32 v{64+i}, v{64+i}, v{80+i}")
        a(f"v_add_f32 v{96+i}, v{96+i}, v{112+i}")
    for i in range(16):
        a(f"v_add_f32 v{64+i}, v{64+i}, v{96+i}")
    a("s_waitcnt lgkmcnt(0)")
    for i in range(16):
        a(f"v_add_f32 v{128+i}, v{128+i}, v{144+i}")
        a(f"v_add_f32 v{160+i}, v{160+i}, v{176+i}")
    for i in range(16):
        a(f"v_add_f32 v{96+i}, v{128+i}, v{160+i}")
    a("s_waitcnt vmcnt(0)")
    a("v_lshlrev_b32 v208, 16, v208")
    a("v_sub_f32 v210, 1.0, v209")
    bf16r(a, 210, 210)
    for k in range(8):
        a(f"v_cvt_pk_bf16_f32 v80, v{64+2*k}, v{65+2*k}")
        a(f"v_lshlrev_b32 v81, 16, v80")
        a(f"v_and_b32 v80, 0xffff0000, v80")
        a(f"v_add_f32 v81, v81, v208")
        a(f"v_add_f32 v80, v80, v208")
        a(f"v_cvt_pk_bf16_f32 v80, v81, v80")
        a(f"v_lshlrev_b32 v81, 16, v80")
        a(f"v_and_b32 v80, 0xffff0000, v80")
        a(f"v_mul_f32 v81, v81, v210")
        a(f"v_mul_f32 v80, v80, v210")
        a(f"v_cvt_pk_bf16_f32 v80, v81, v80")
        a(f"v_lshlrev_b32 v{64+2*k}, 16, v80")
        a(f"v_and_b32 v{65+2*k}, 0xffff0000, v80")
        a(f"v_lshlrev_b32 v81, 16, v{192+k}")
        a(f"v_and_b32 v80, 0xffff0000, v{192+k}")
        a(f"v_lshlrev_b32 v82, 16, v{200+k}")
        a(f"v_and_b32 v83, 0xffff0000, v{200+k}")
        a(f"v_mul_f32 v81, v81, v82")
        a(f"v_mul_f32 v80, v80, v83")
        a(f"v_cvt_pk_bf16_f32 v80, v81, v80")
        a(f"v_lshlrev_b32 v81, 16, v80")
        a(f"v_and_b32 v80, 0xffff0000, v80")
        a(f"v_fma_f32 v81, 2.0, v{96+2*k}, v81")
        a(f"v_fma_f32 v80, 2.0, v{97+2*k}, v80")
        a(f"v_mul_f32 v81, v81, v209")
        a(f"v_mul_f32 v80, v80, v209")
        a(f"v_add_f32 v{64+2*k}, v{64+2*k}, v81")
        a(f"v_add_f32 v{65+2*k}, v{65+2*k}, v80")
    a("v_lshlrev_b32 v23, 2, v22")
    for i in range(4):
        a(f"buffer_store_dwordx4 v[{64+4*i}:{67+4*i}], v23, s[{S6}:{S6+3}], 0 offen offset:{16*i}")
    if STAMPS:
        a("s_waitcnt vmcnt(0)")
        a.stamp(11)
        a.stamp_flush()
    a.label("L_end")
    a("s_endpgm")


def main():
    ref = open(f"cdna_kernels/{NAME}.s.ref").read().split("\n")
    head = [l for l in ref if l.startswith(";") and "@launch" not in l and "Override" not in l and "grid=ceil" not in l]
    out = head + [
        "; @launch grid=(256,1,1) block=(256,1,1) lds=163840",
        '.amdgcn_target "amdgcn-amd-amdhsa--gfx950"',
        ".text",
    ]
    a = Asm()
    kernel(a)
    out += a.lines
    out.append('.section .rodata,"a"')
    out.append(f""".p2align 6
.amdhsa_kernel {NAME}_kernel
  .amdhsa_next_free_vgpr 512
  .amdhsa_next_free_sgpr 102
  .amdhsa_accum_offset 256
  .amdhsa_group_segment_fixed_size 0
  .amdhsa_kernarg_size 144
  .amdhsa_user_sgpr_count 2
  .amdhsa_user_sgpr_kernarg_segment_ptr 1
  .amdhsa_system_sgpr_workgroup_id_x 1
.end_amdhsa_kernel
""")
    path = sys.argv[1] if len(sys.argv) > 1 else f"f3.s"
    open(path, "w").write("\n".join(out) + "\n")


main()
```

```python
import os
import struct
import sys

NAME = "gated_mix__ssm_conv_s5__mixer_token_mlp__prompt"
STAMPS = int(os.environ.get("STAMPS", "0"))
SLEEP = int(os.environ.get("SLEEP", "4"))
SSM_FIRST = os.environ.get("MIXFIRST") != "1"

KP = dict(x=64, lre=66, lim=68, bre=70, bim=72, cre=74, cim=76, ldt=78, dsk=80,
          w1=84, b1=86, w2=88, b2=90, gw=92, out=94, dbg=96, ws=98)
SZ = dict(x=2048 * 512 * 2, lre=1024, lim=1024, bre=512 * 512 * 2, bim=512 * 512 * 2,
          cre=512 * 512 * 2, cim=512 * 512 * 2, ldt=1024, dsk=1024, w1=2048 * 1376 * 2,
          b1=1376 * 2, w2=1376 * 2048 * 2, b2=4096, gw=1024, out=2048 * 512 * 4, dbg=256)
WS = dict(
    hln=(0x0000000, 2048 * 512 * 2),
    g=(0x0200000, 768 * 128),
    e=(0x0300000, 16 * 512 * 16),
    fl=(0x0380000, 0x10000),
    u=(0x0400000, 512 * 1408 * 2),
    h=(0x0800000, 2048 * 1024 * 2),
)
URS = 1408 * 2
WREG = 40960
SLOT = 8192
NSLOT = 5
PUP = 24576
LNR = 4

S0, S1, S2, S3, S4, S5, S6, S7 = 8, 12, 16, 20, 24, 28, 32, 36
SDBG = 4
sXCD, sR, sWB = 40, 41, 42
sT0, sT1, sT2, sT3, sT4 = 43, 44, 45, 46, 47
sST, sDT, sFLG, sA, sB, sC0, sC1, sT, sCNT = 52, 53, 54, 55, 56, 57, 58, 59, 60
sC2, sC3 = 61, 62
sP0, sP1 = 50, 51
sFB = 63
TOUCH = os.environ.get('TOUCH', 'hus')
W1PRE = int(os.environ.get('W1PRE', '2'))
sN = 100
FSTR = 32
FL_LN, FL_U, FL_H = 0, 0x2000, 0x8000

f2u = lambda f: struct.unpack("<I", struct.pack("<f", f))[0]


class Asm:
    def __init__(self):
        self.lines = []
        self.uid = 0
        self.vmq = []

    def __call__(self, s):
        self.lines.append("    " + s)

    def label(self, l):
        self.lines.append(l + ":")

    def newlabel(self, p):
        self.uid += 1
        return f"L_{p}_{self.uid}"

    def raw(self, s):
        self.lines.append(s)

    def vm(self, s, tag=None):
        self(s)
        self.vmq.append(tag)

    def vwait(self, tag):
        if tag not in self.vmq:
            return
        idx = max(i for i, t in enumerate(self.vmq) if t == tag)
        n = len(self.vmq) - 1 - idx
        n = min(n, 63)
        self(f"s_waitcnt vmcnt({n})")
        self.vmq = self.vmq[len(self.vmq) - n:] if n else []

    def vwait0(self):
        self("s_waitcnt vmcnt(0)")
        self.vmq = []

    def stamp(self, idx):
        if STAMPS and (idx < 16 or STAMPS > 1):
            self("s_memrealtime s[0:1]")
            self("s_waitcnt lgkmcnt(0)")
            self(f"v_writelane_b32 v31, s0, {idx}")

    def cstamp(self, idx):
        if STAMPS:
            self("s_memtime s[0:1]")
            self("s_waitcnt lgkmcnt(0)")
            self(f"v_writelane_b32 v31, s0, {idx}")

    def stamp_flush(self):
        if not STAMPS:
            return
        self.cstamp(63)
        self(f"s_add_u32 s{S0}, s{KP['ws']}, 0x2000000")
        self(f"s_addc_u32 s{S0+1}, s{KP['ws']+1}, 0")
        self(f"s_and_b32 s{S0+1}, s{S0+1}, 0xffff")
        self(f"s_mov_b32 s{S0+2}, 0x100000")
        self(f"s_mov_b32 s{S0+3}, 0x00020000")
        self(f"s_lshl_b32 s{sT0}, s2, 2")
        self(f"s_add_u32 s{sT0}, s{sT0}, s3")
        self(f"s_lshl_b32 s{sT0}, s{sT0}, 8")
        self("v_lshlrev_b32 v2, 2, v1")
        self(f"buffer_store_dword v31, v2, s[{S0}:{S0+3}], s{sT0} offen")


def srd(a, slot, key):
    p = KP[key]
    a(f"s_mov_b32 s{slot}, s{p}")
    a(f"s_and_b32 s{slot+1}, s{p+1}, 0xffff")
    a(f"s_mov_b32 s{slot+2}, {SZ[key]}")
    a(f"s_mov_b32 s{slot+3}, 0x00020000")


def srdws(a, slot, key):
    off, size = WS[key]
    p = KP['ws']
    a(f"s_add_u32 s{slot}, s{p}, {off}")
    a(f"s_addc_u32 s{slot+1}, s{p+1}, 0")
    a(f"s_and_b32 s{slot+1}, s{slot+1}, 0xffff")
    a(f"s_mov_b32 s{slot+2}, {size}")
    a(f"s_mov_b32 s{slot+3}, 0x00020000")


class Op:
    def __init__(self, kind, srds, rs, scur, vdma, vfrag, perm=False, hmap=False):
        self.kind = kind
        self.srds = srds
        self.rs = rs
        self.scur = scur
        self.vdma = vdma
        self.vfrag = vfrag
        self.perm = perm
        self.hmap = hmap
        self.rowoff = [i * 8 * rs for i in range(8)]
        self.adv = 128 if kind == 'KC' else 64 * rs


def setup_dma(a, op):
    rs = op.rs
    a(f"v_lshrrev_b32 v14, 3, v1")
    a(f"v_mul_u32_u24 v14, {rs}, v14")
    a(f"v_and_b32 v15, 7, v1")
    if op.kind == 'KC':
        a(f"v_lshrrev_b32 v16, 4, v1")
        a(f"v_xor_b32 v15, v15, v16")
        a(f"v_lshlrev_b32 v15, 4, v15")
        a(f"v_add_u32 v{op.vdma}, v14, v15")
        a(f"v_xor_b32 v15, 64, v15")
        a(f"v_add_u32 v{op.vdma+1}, v14, v15")
    else:
        a(f"v_lshrrev_b32 v16, 2, v1")
        a(f"v_and_b32 v16, 4, v16")
        a(f"v_xor_b32 v15, v15, v16")
        a(f"v_lshl_add_u32 v{op.vdma}, v15, 4, v14")


def setup_frag(a, op, sbase):
    if op.kind == 'KC':
        a(f"v_and_b32 v14, 31, v1")
        if op.perm:
            a(f"v_lshrrev_b32 v15, 2, v14")
            a(f"v_and_b32 v15, 1, v15")
            a(f"v_lshlrev_b32 v15, 5, v15")
            a(f"v_lshrrev_b32 v16, 3, v14")
            a(f"v_lshl_add_u32 v15, v16, 2, v15")
            a(f"v_and_b32 v14, 3, v14")
            a(f"v_add_u32 v14, v14, v15")
        a(f"v_lshrrev_b32 v15, 1, v14")
        a(f"v_and_b32 v15, 7, v15")
        a(f"v_lshrrev_b32 v16, 5, v1")
        if op.hmap:
            a(f"v_lshlrev_b32 v16, 1, v16")
        a(f"v_xor_b32 v15, v15, v16")
        a(f"v_lshlrev_b32 v15, 4, v15")
        a(f"v_lshl_add_u32 v14, v14, 7, v15")
        if sbase is None:
            a(f"v_mov_b32 v{op.vfrag}, v14")
        else:
            a(f"v_add_u32 v{op.vfrag}, s{sbase}, v14")
        for j in range(1, 4):
            c = (((j >> 1) << 2) | (j & 1)) << 4 if op.hmap else j << 5
            a(f"v_xor_b32 v{op.vfrag+j}, {c}, v{op.vfrag}")
    else:
        a(f"v_lshrrev_b32 v14, 5, v1")
        a(f"v_lshlrev_b32 v14, 3, v14")
        a(f"v_lshrrev_b32 v15, 2, v1")
        a(f"v_and_b32 v15, 3, v15")
        a(f"v_add_u32 v14, v14, v15")
        a(f"v_lshlrev_b32 v14, 7, v14")
        a(f"v_lshrrev_b32 v16, 4, v1")
        a(f"v_and_b32 v16, 1, v16")
        a(f"v_lshlrev_b32 v16, 1, v16")
        a(f"v_lshrrev_b32 v17, 1, v1")
        a(f"v_and_b32 v17, 1, v17")
        a(f"v_add_u32 v16, v16, v17")
        a(f"v_lshrrev_b32 v15, 1, v15")
        a(f"v_lshlrev_b32 v15, 2, v15")
        a(f"v_xor_b32 v16, v16, v15")
        a(f"v_lshl_add_u32 v14, v16, 4, v14")
        a(f"v_and_b32 v17, 1, v1")
        a(f"v_lshl_add_u32 v14, v17, 3, v14")
        a(f"v_add_u32 v{op.vfrag}, s{sbase}, v14")
        a(f"v_xor_b32 v{op.vfrag+1}, 64, v{op.vfrag}")


def dma_groups(op, st, ldsoff, sbase, tag, rng=range(8), m=0):
    out = []
    for i in rng:
        v = op.vdma + ((i & 1) if op.kind == 'KC' else 0)
        out.append(([f"s_add_u32 m0, s{sbase}, {ldsoff + i * 1024}",
                     f"s_add_u32 s{sT}, s{op.scur}, {op.rowoff[i] + st * op.adv}"],
                    f"buffer_load_dwordx4 v{v}, s[{op.srds[i]}:{op.srds[i]+3}], s{sT} offen lds", tag))
    return out


def emit_groups(a, grps):
    for pre, ld, tag in grps:
        for l in pre:
            a(l)
        a.vm(ld, tag)


def read_lines(op, ldsoff, j, dst, rf='v'):
    out = []
    for q in range(2):
        d = dst + q * 4
        if op.kind == 'KC':
            off = ldsoff + q * (2048 if op.perm else 4096)
            out.append(f"ds_read_b128 {rf}[{d}:{d+3}], v{op.vfrag+j} offset:{off}")
        else:
            off = ldsoff + j * 2048
            out.append(f"ds_read_b64_tr_b16 {rf}[{d}:{d+1}], v{op.vfrag+q} offset:{off}")
            out.append(f"ds_read_b64_tr_b16 {rf}[{d+2}:{d+3}], v{op.vfrag+q} offset:{off+512}")
    return out


def reads(a, op, ldsoff, j, dst, rf='v'):
    for l in read_lines(op, ldsoff, j, dst, rf):
        a(l)


def bf16r(a, dst, src):
    a(f"v_cvt_pk_bf16_f32 v{dst}, v{src}, v{src}")
    a(f"v_lshlrev_b32 v{dst}, 16, v{dst}")


def nonce_issue(a, nv):
    l = a.newlabel("ni")
    a("s_cmp_lg_u32 s3, 0")
    a(f"s_cbranch_scc1 {l}")
    a(f"buffer_load_dwordx2 v[{nv}:{nv+1}], off, s[{SDBG}:{SDBG+3}], 0 sc1")
    a.label(l)


def set_flag(a, base, tag=None, first=None):
    if tag is None:
        a.vwait0()
    elif tag != "done":
        a.vwait(tag)
    a("s_barrier")
    l = a.newlabel("nf")
    a("s_cmp_lg_u32 s3, 0")
    a(f"s_cbranch_scc1 {l}")
    if first:
        lp = a.newlabel("np")
        ld = a.newlabel("npd")
        a(f"s_mov_b32 s{sCNT}, 20000")
        a.label(lp)
        a(f"v_readfirstlane_b32 s{sN}, v{first}")
        a(f"v_readfirstlane_b32 s{sN+1}, v{first+1}")
        a(f"s_cmp_lg_u32 s{sN}, 0")
        a(f"s_cbranch_scc1 {ld}")
        a(f"buffer_load_dwordx2 v[{first}:{first+1}], off, s[{SDBG}:{SDBG+3}], 0 sc1")
        a("s_waitcnt vmcnt(0)")
        a(f"s_sub_u32 s{sCNT}, s{sCNT}, 1")
        a(f"s_cmp_lg_u32 s{sCNT}, 0")
        a(f"s_cbranch_scc1 {lp}")
        a.label(ld)
        srdws(a, SDBG, 'fl')
    a("s_mov_b64 exec, 1")
    a(f"s_lshl_b32 s{sCNT}, s{sFLG}, 5")
    a(f"v_mov_b32 v14, s{sN}")
    a(f"v_mov_b32 v15, s{sN+1}")
    a(f"buffer_store_dwordx2 v[14:15], off, s[{SDBG}:{SDBG+3}], s{sCNT} offset:{base & 0xfff} sc1" if base < 0x1000 else
      f"s_add_u32 s{sCNT}, s{sCNT}, {base}\n    buffer_store_dwordx2 v[14:15], off, s[{SDBG}:{SDBG+3}], s{sCNT} sc1")
    a("s_mov_b64 exec, -1")
    a.label(l)


def touch(a, op, stages, two=False):
    a(f"v_mul_u32_u24 v18, {op.rs}, v1")
    for st in stages:
        a(f"s_add_u32 s{sT}, s{op.scur}, {st * op.adv}")
        a.vm(f"buffer_load_dword v5, v18, s[{op.srds[0]}:{op.srds[0]+3}], s{sT} offen")
        if two:
            a.vm(f"buffer_load_dword v5, v18, s[{op.srds[0]}:{op.srds[0]+3}], s{sT} offen offset:124")


def wait_flags(a, n=1, dv=18):
    l = a.newlabel("poll")
    d = a.newlabel("polld")
    a("s_cmp_lg_u32 s3, 0")
    a(f"s_cbranch_scc1 {d}")
    a(f"s_mov_b32 s{sCNT}, 20000")
    a.label(l)
    for i in range(n):
        a(f"buffer_load_dwordx2 v[{dv+2*i}:{dv+1+2*i}], v{14+i}, s[{SDBG}:{SDBG+3}], 0 offen sc1")
    a("s_waitcnt vmcnt(0)")
    a(f"v_cmp_ne_u64 vcc, s[{sN}:{sN+1}], v[{dv}:{dv+1}]")
    for i in range(1, n):
        a(f"v_cmp_ne_u64 s[48:49], s[{sN}:{sN+1}], v[{dv+2*i}:{dv+1+2*i}]")
        a(f"s_or_b64 vcc, vcc, s[48:49]")
    a(f"s_cbranch_vccz {d}")
    if SLEEP:
        a(f"s_sleep {SLEEP}")
    a(f"s_sub_u32 s{sCNT}, s{sCNT}, 1")
    a(f"s_cmp_lg_u32 s{sCNT}, 0")
    a(f"s_cbranch_scc1 {l}")
    a.label(d)
    a("s_mov_b64 exec, -1")
    a("s_barrier")


def c_share_touch(a):
    a(f"s_and_b32 s{sT0}, s{sR}, 7")
    a(f"s_lshl_b32 s{sT0}, s{sT0}, 1")
    a(f"s_and_b32 s{sT1}, s3, 1")
    a(f"s_add_u32 s{sT0}, s{sT0}, s{sT1}")
    a(f"s_lshl_b32 s{sT0}, s{sT0}, 12")
    a(f"s_lshl_b32 s{sT1}, s{sDT}, 16")
    a(f"s_add_u32 s{sT0}, s{sT0}, s{sT1}")
    a("v_and_b32 v18, 31, v1")
    a("v_lshlrev_b32 v18, 7, v18")
    a.vm(f"buffer_load_dword v5, v18, s[{S5}:{S5+3}], s{sT0} offen")


def w2_share_touch(a):
    a(f"s_lshr_b32 s{sT0}, s{sR}, 3")
    a(f"s_mul_i32 s{sT0}, s{sT0}, 460")
    a(f"s_mul_i32 s{sT1}, s3, 115")
    a(f"s_add_u32 s{sT0}, s{sT0}, s{sT1}")
    a(f"s_lshl_b32 s{sT0}, s{sT0}, 12")
    a(f"s_lshl_b32 s{sT1}, s{sST}, 7")
    a(f"s_add_u32 s{sT0}, s{sT0}, s{sT1}")
    a(f"s_add_u32 s{sT1}, s{sT0}, {64*4096}")
    a("v_lshlrev_b32 v18, 12, v1")
    a.vm(f"buffer_load_dword v5, v18, s[{S6}:{S6+3}], s{sT0} offen")
    a.vm(f"buffer_load_dword v5, v18, s[{S6}:{S6+3}], s{sT1} offen")


def bu_share_touch(a):
    a(f"s_cmp_ge_u32 s{sR}, 24")
    a(f"s_cselect_b32 s{S7}, s{KP['bim']}, s{KP['bre']}")
    a(f"s_cselect_b32 s{S7+1}, s{KP['bim']+1}, s{KP['bre']+1}")
    a(f"s_and_b32 s48, s{sXCD}, 1")
    a(f"s_lshl_b32 s48, s48, 18")
    a(f"s_and_b32 s49, s{sR}, 7")
    a(f"s_mov_b32 s{S7+2}, {SZ['bre']}")
    a(f"s_lshr_b32 s50, s{sXCD}, 1")
    a(f"s_lshl_b32 s50, s50, 19")
    a(f"s_cmp_lt_u32 s{sR}, 16")
    a(f"s_cselect_b32 s{S7}, s{KP['x']}, s{S7}")
    a(f"s_cselect_b32 s{S7+1}, s{KP['x']+1}, s{S7+1}")
    a(f"s_cselect_b32 s{S7+2}, {SZ['x']}, s{S7+2}")
    a(f"s_cselect_b32 s48, s50, s48")
    a(f"s_cselect_b32 s49, s{sR}, s49")
    a(f"s_and_b32 s{S7+1}, s{S7+1}, 0xffff")
    a(f"s_mov_b32 s{S7+3}, 0x00020000")
    a(f"s_lshl_b32 s49, s49, 2")
    a(f"s_add_u32 s49, s49, s3")
    a(f"s_lshl_b32 s49, s49, 13")
    a(f"s_add_u32 s48, s48, s49")
    a("v_lshlrev_b32 v18, 7, v1")
    a.vm(f"buffer_load_dword v5, v18, s[{S7}:{S7+3}], s48 offen")


def cmul_add(a, dr, di, ar, ai, br, bi, cr, ci, t0, t1):
    a(f"v_fma_f32 v{t0}, -v{ai}, v{bi}, v{cr}")
    a(f"v_fma_f32 v{t1}, v{ai}, v{br}, v{ci}")
    a(f"v_fma_f32 v{dr}, v{ar}, v{br}, v{t0}")
    a(f"v_fma_f32 v{di}, v{ar}, v{bi}, v{t1}")


def csq(a, r, i, t0, t1):
    a(f"v_mul_f32 v{t0}, v{i}, v{i}")
    a(f"v_mul_f32 v{t1}, v{r}, v{i}")
    a(f"v_fma_f32 v{r}, v{r}, v{r}, -v{t0}")
    a(f"v_add_f32 v{i}, v{t1}, v{t1}")


def lam_compute(a, raw, base, t):
    lr, li, cr, ci = base, base + 1, base + 2, base + 3
    Lr, Li, dt = raw, raw + 1, raw + 2
    a(f"v_lshlrev_b32 v{Lr}, 16, v{Lr}")
    a(f"v_lshlrev_b32 v{Li}, 16, v{Li}")
    a(f"v_lshlrev_b32 v{dt}, 16, v{dt}")
    a(f"v_mul_f32 v{dt}, 0x3fb8aa3b, v{dt}")
    a(f"v_exp_f32 v{dt}, v{dt}")
    a("s_nop 0")
    bf16r(a, dt, dt)
    a(f"v_mul_f32 v{t}, v{dt}, v{Lr}")
    a(f"v_mul_f32 v{t+1}, v{dt}, v{Li}")
    a(f"v_mul_f32 v{t}, 0x3fb8aa3b, v{t}")
    a(f"v_exp_f32 v{t}, v{t}")
    a(f"v_mul_f32 v{t+1}, 0.15915494, v{t+1}")
    a(f"v_fract_f32 v{t+1}, v{t+1}")
    a(f"v_cos_f32 v{t+2}, v{t+1}")
    a(f"v_sin_f32 v{t+3}, v{t+1}")
    a("s_nop 0")
    a(f"v_mul_f32 v{lr}, v{t}, v{t+2}")
    a(f"v_mul_f32 v{li}, v{t}, v{t+3}")
    a(f"v_add_f32 v{t}, -1.0, v{lr}")
    a(f"v_mul_f32 v{t+1}, v{Lr}, v{Lr}")
    a(f"v_fma_f32 v{t+1}, v{Li}, v{Li}, v{t+1}")
    a(f"v_rcp_f32 v{t+1}, v{t+1}")
    a(f"v_mul_f32 v{t+2}, v{t}, v{Lr}")
    a(f"v_fma_f32 v{t+2}, v{li}, v{Li}, v{t+2}")
    a(f"v_mul_f32 v{t+3}, v{li}, v{Lr}")
    a(f"v_fma_f32 v{t+3}, -v{t}, v{Li}, v{t+3}")
    a(f"v_mul_f32 v{cr}, v{t+2}, v{t+1}")
    a(f"v_mul_f32 v{ci}, v{t+3}, v{t+1}")


def ln_compute(a):
    R = LNR
    XR, GW, GU, XU = 32, 48, 52, 60
    for k in range(4):
        a(f"v_lshlrev_b32 v{GU+2*k}, 16, v{GW+k}")
        a(f"v_and_b32 v{GU+1+2*k}, 0xffff0000, v{GW+k}")
    for r in range(R):
        for k in range(4):
            a(f"v_lshlrev_b32 v{XU+8*r+2*k}, 16, v{XR+4*r+k}")
            a(f"v_and_b32 v{XU+1+8*r+2*k}, 0xffff0000, v{XR+4*r+k}")
    for r in range(R):
        X = XU + 8 * r
        a(f"v_add_f32 v{92+r}, v{X}, v{X+1}")
        for k in range(2, 8):
            a(f"v_add_f32 v{92+r}, v{92+r}, v{X+k}")
        for k in range(4):
            a(f"v_mul_f32 v100, v{X+2*k}, v{GU+2*k}")
            a(f"v_mul_f32 v101, v{X+2*k+1}, v{GU+1+2*k}")
            a(f"v_cvt_pk_bf16_f32 v100, v100, v101")
            a(f"v_lshlrev_b32 v101, 16, v100")
            a(f"v_and_b32 v100, 0xffff0000, v100")
            if k == 0:
                a(f"v_add_f32 v{96+r}, v100, v101")
            else:
                a(f"v_add_f32 v{96+r}, v{96+r}, v100")
                a(f"v_add_f32 v{96+r}, v{96+r}, v101")

    def wave_sum(regs):
        for sh in (8, 4, 2, 1):
            a("s_nop 1")
            for v in regs:
                a(f"v_add_f32_dpp v{v}, v{v}, v{v} row_ror:{sh} row_mask:0xf bank_mask:0xf")
        a("s_nop 1")
        for v in regs:
            for q in range(4):
                a(f"v_readlane_b32 s{48+q}, v{v}, {16*q}")
            a("s_nop 1")
            a(f"v_mov_b32 v{v}, s48")
            for q in range(1, 4):
                a(f"v_add_f32 v{v}, s{48+q}, v{v}")

    wave_sum([92 + r for r in range(R)] + [96 + r for r in range(R)])
    for r in range(R):
        X = XU + 8 * r
        a(f"v_mul_f32 v{92+r}, 0x3b000000, v{92+r}")
        for k in range(8):
            a(f"v_sub_f32 v100, v{X+k}, v{92+r}")
            if k == 0:
                a(f"v_mul_f32 v{102+r}, v100, v100")
            else:
                a(f"v_fma_f32 v{102+r}, v100, v100, v{102+r}")
    wave_sum([102 + r for r in range(R)])
    for r in range(R):
        X = XU + 8 * r
        a(f"v_mul_f32 v{102+r}, 0x3b000000, v{102+r}")
        bf16r(a, 102 + r, 102 + r)
        a(f"v_add_f32 v{102+r}, 0x3727c5ac, v{102+r}")
        bf16r(a, 102 + r, 102 + r)
        a(f"v_sqrt_f32 v{102+r}, v{102+r}")
        a("s_nop 0")
        bf16r(a, 102 + r, 102 + r)
        a(f"v_rcp_f32 v{102+r}, v{102+r}")
        bf16r(a, 92 + r, 92 + r)
        for k in range(4):
            a(f"v_sub_f32 v100, v{X+2*k}, v{92+r}")
            a(f"v_sub_f32 v101, v{X+2*k+1}, v{92+r}")
            a(f"v_cvt_pk_bf16_f32 v100, v100, v101")
            a(f"v_lshlrev_b32 v101, 16, v100")
            a(f"v_and_b32 v100, 0xffff0000, v100")
            a(f"v_mul_f32 v101, v101, v{102+r}")
            a(f"v_mul_f32 v100, v100, v{102+r}")
            a(f"v_cvt_pk_bf16_f32 v{106+4*r+k}, v101, v100")
        a(f"s_add_u32 s{sT1}, s{sT0}, {r*1024}")
        a.vm(f"buffer_store_dwordx4 v[{106+4*r}:{109+4*r}], v30, s[{S2}:{S2+3}], s{sT1} offen sc1")
        bf16r(a, 96 + r, 96 + r)
        a(f"v_mul_f32 v{96+r}, 0xbfb8aa3b, v{96+r}")
        a(f"v_exp_f32 v{96+r}, v{96+r}")
        a("s_nop 0")
        a(f"v_add_f32 v{96+r}, 1.0, v{96+r}")
        a(f"v_rcp_f32 v{96+r}, v{96+r}")
        a("s_nop 0")
        bf16r(a, 96 + r, 96 + r)
    a("v_mov_b32 v100, v96")
    for r in range(1, R):
        a(f"v_cmp_eq_u32 vcc, {r}, v1")
        a("s_nop 1")
        a(f"v_cndmask_b32 v100, v100, v{96+r}, vcc")
    a("v_lshlrev_b32 v101, 2, v1")
    a(f"s_lshl_b32 s{sT1}, s{sT2}, 7")
    a(f"s_mov_b64 exec, {(1 << R) - 1}")
    a.vm(f"buffer_store_dword v100, v101, s[{S3}:{S3+3}], s{sT1} offen sc1", "lnst")
    a("s_mov_b64 exec, -1")


class Pre:
    def __init__(self, a, items, slots, name):
        self.a, self.items, self.slots, self.name = a, items, slots, name
        self.nxt = 0
        self.done = set()
        self.allowed = set(range(NSLOT))

    def can(self, k):
        s = self.slots[k]
        return s in self.allowed and all(i in self.done for i in range(k) if self.slots[i] == s)

    def groups(self):
        k = self.nxt
        assert self.can(k)
        self.nxt += 1
        kind, op, st, rf, dst = self.items[k]
        return dma_groups(op, st, self.slots[k] * SLOT, sWB, f"{self.name}{k}")

    def issue(self, maxn=99):
        while maxn > 0 and self.nxt < len(self.items) and self.can(self.nxt):
            emit_groups(self.a, self.groups())
            maxn -= 1

    def process(self, i, stamp=None):
        a = self.a
        kind, op, st, rf, dst = self.items[i]
        if kind == 'cr':
            return
        a.vwait(f"{self.name}{i}")
        if stamp is not None:
            a.stamp(stamp)
        if kind == 'p':
            for j in range(4):
                reads(a, op, self.slots[i] * SLOT, j, dst + j * 8, rf)
            a("s_waitcnt lgkmcnt(0)")
            self.done.add(i)
        else:
            sr, si = self.slots[i - 1] * SLOT, self.slots[i] * SLOT
            for jh in range(2):
                for jj in range(2):
                    reads(a, op, sr, jh * 2 + jj, 32 + jj * 16)
                    reads(a, op, si, jh * 2 + jj, 40 + jj * 16)
                for jj in range(2):
                    a(f"s_waitcnt lgkmcnt({4 - 4 * jj})")
                    jp = jh * 2 + jj
                    hs = 2 * st + (jp >> 1)
                    for q in range(2):
                        for h in range(2):
                            j = 2 * (jp & 1) + h
                            d = dst + hs * 32 + j * 8 + q * 4
                            for r in range(2):
                                re = 32 + jj * 16 + q * 4 + 2 * h + r
                                im = re + 8
                                a(f"v_perm_b32 v{d+2*r}, v{im}, v{re}, s{sP0}")
                                a(f"v_perm_b32 v{d+2*r+1}, v{im}, v{re}, s{sP1}")
            self.done.add(i - 1)
            self.done.add(i)

    def run(self, first, stamp=None, hook=None):
        for i in range(first, len(self.items)):
            self.issue()
            if hook:
                hook(i)
            self.process(i, None if stamp is None else stamp + i)
        self.issue()


FB = [32, 40, 48, 56]


def stream2(a, sop, stages, mf, name, tail=(), sbase=None, hook=None, ns=NSLOT, tail0=None):
    n = len(stages)
    nr = 2 if sop.kind == 'KC' else 4
    tail = list(tail)

    def rl(g):
        i, j = divmod(g, 4)
        return read_lines(sop, (i % ns) * SLOT, j, FB[g % 4])
    a.vwait(f"{name}0")
    if sbase is not None:
        a.stamp(sbase)
    for l in rl(0) + rl(1):
        a(l)
    pend = []
    nxt = 2
    for g in range(4 * n):
        i, j = divmod(g, 4)
        if j == 0:
            assert not pend
            cnt = 0
            while nxt < n and nxt - ns < i and cnt < 2:
                pend += dma_groups(sop, stages[nxt], (nxt % ns) * SLOT, sWB, f"{name}{nxt}")
                nxt += 1
                cnt += 1
            if not pend and tail and i >= tail0:
                pend = tail.pop(0)()
            per = len(pend) // 4
        rd = []
        if g + 2 < 4 * n:
            if j == 2:
                a.vwait(f"{name}{i+1}")
                if sbase is not None:
                    a.stamp(sbase + i + 1)
            rd = rl(g + 2)
        if hook:
            hook(i, j)
        a(f"s_waitcnt lgkmcnt({nr if g + 1 < 4 * n else 0})")
        for k, l in enumerate(mf(stages[i], j, FB[g % 4])):
            a(l)
            for r in rd[k * nr // 4:(k + 1) * nr // 4] if nr == 4 else (rd[k // 2:k // 2 + 1] if k % 2 == 0 else []):
                a(r)
            if pend and (per == 4 or k % 2 == 1):
                emit_groups(a, [pend.pop(0)])
    assert not pend and not tail


def partial_addr(a):
    a("v_and_b32 v14, 31, v1")
    a("v_lshrrev_b32 v15, 5, v1")
    a("v_and_b32 v16, 15, v1")
    a("v_xor_b32 v15, v15, v16")
    a("v_lshlrev_b32 v15, 4, v15")
    a("v_lshl_add_u32 v14, v14, 8, v15")
    a(f"v_add_u32 v40, s{sWB}, v14")
    for k in range(1, 8):
        a(f"v_xor_b32 v{40+k}, {k << 5}, v40")


def write_partial(a, rf, accbase, ldsoff):
    partial_addr(a)
    a("s_nop 7")
    for qm in range(2):
        for qn in range(2):
            for j in range(4):
                acc = accbase + (qm * 2 + qn) * 16 + 4 * j
                a(f"ds_write_b128 v{40 + qm * 4 + j}, {rf}[{acc}:{acc+3}] offset:{ldsoff + qn * 8192}")


def read_partials(a, off, dst):
    a("v_lshrrev_b32 v14, 2, v0")
    a("v_and_b32 v16, 3, v0")
    a("v_lshlrev_b32 v15, 2, v16")
    a("v_and_b32 v17, 15, v14")
    a("v_xor_b32 v15, v15, v17")
    a("v_lshlrev_b32 v15, 4, v15")
    a("v_lshl_add_u32 v40, v14, 8, v15")
    if off:
        a(f"v_add_u32 v40, {off}, v40")
    for i in range(1, 4):
        a(f"v_xor_b32 v{40+i}, {i << 4}, v40")
    for i in range(4):
        a(f"v_add_u32 v{44+i}, {2*WREG}, v{40+i}")
    for w in range(4):
        for i in range(4):
            d = dst + w * 16 + i * 4
            a(f"ds_read_b128 v[{d}:{d+3}], v{40 + (w >> 1) * 4 + i} offset:{(w&1)*WREG}")


def sum_partials(a, src, dst):
    for i in range(16):
        a(f"v_add_f32 v{src+i}, v{src+i}, v{src+16+i}")
        a(f"v_add_f32 v{src+32+i}, v{src+32+i}, v{src+48+i}")
    for i in range(16):
        a(f"v_add_f32 v{dst+i}, v{src+i}, v{src+32+i}")


def make_c_ops(a):
    srd(a, S5, 'cre')
    srd(a, S7, 'cim')
    a(f"s_lshl_b32 s{sC1}, s3, 8")
    a(f"s_lshl_b32 s{sT0}, s{sDT}, 16")
    a(f"s_add_u32 s{sC1}, s{sC1}, s{sT0}")
    a(f"s_mov_b32 s{sP0}, 0x05040100")
    a(f"s_mov_b32 s{sP1}, 0x07060302")
    opr = Op('KC', [S5] * 8, 1024, sC1, 2, 6)
    opi = Op('KC', [S7] * 8, 1024, sC1, 2, 6)
    setup_dma(a, opr)
    setup_frag(a, opr, sWB)
    return [('cr', opr, 0, 'v', 128), ('ci', opi, 0, 'v', 128), ('cr', opr, 1, 'v', 128), ('ci', opi, 1, 'v', 128)]


def c_share_touch2(a):
    a(f"s_and_b32 s{sT0}, s{sR}, 7")
    a(f"s_lshl_b32 s{sT0}, s{sT0}, 1")
    a(f"s_and_b32 s{sT1}, s3, 1")
    a(f"s_add_u32 s{sT0}, s{sT0}, s{sT1}")
    a(f"s_lshl_b32 s{sT0}, s{sT0}, 12")
    a(f"s_lshl_b32 s{sT1}, s{sDT}, 16")
    a(f"s_add_u32 s{sT0}, s{sT0}, s{sT1}")
    a("v_and_b32 v18, 31, v1")
    a("v_lshlrev_b32 v18, 7, v18")
    l1, l2 = a.newlabel("ct"), a.newlabel("ct")
    a("s_cmp_ge_u32 s3, 2")
    a(f"s_cbranch_scc1 {l1}")
    a(f"buffer_load_dword v5, v18, s[{S5}:{S5+3}], s{sT0} offen")
    a(f"s_branch {l2}")
    a.label(l1)
    a.vm(f"buffer_load_dword v5, v18, s[{S7}:{S7+3}], s{sT0} offen")
    a.label(l2)


def mix_start(a, sdst):
    a(f"s_mul_i32 s{sdst}, s3, 6")
    a("s_cmp_eq_u32 s3, 3")
    a(f"s_cselect_b32 s{sdst}, 17, s{sdst}")


def make_w2_op(a, setup_km_frag):
    srd(a, S6, 'w2')
    mix_start(a, sC2)
    a(f"s_lshl_b32 s{sC2}, s{sC2}, 18")
    a(f"s_lshl_b32 s{sT0}, s{sST}, 7")
    a(f"s_add_u32 s{sC2}, s{sC2}, s{sT0}")
    op = Op('KM', [S6] * 8, 4096, sC2, 12, 10)
    setup_dma(a, op)
    if setup_km_frag:
        setup_frag(a, op, sWB)
    return op


def w2_opt_issue(a, op, slot):
    l1 = a.newlabel("w2a")
    a("s_cmp_ge_u32 s3, 2")
    a(f"s_cbranch_scc1 {l1}")
    for pre, ld, tag in dma_groups(op, 5, slot * SLOT, sWB, None):
        for l in pre:
            a(l)
        a(ld)
    a.label(l1)


def w2_opt_read(a, op, slot):
    l2 = a.newlabel("w2b")
    a("s_cmp_ge_u32 s3, 2")
    a(f"s_cbranch_scc1 {l2}")
    a("s_waitcnt vmcnt(0)")
    for j in range(4):
        reads(a, op, slot * SLOT, j, 5 * 32 + j * 8, 'a')
    a("s_waitcnt lgkmcnt(0)")
    a.label(l2)


def poll_issue(a, addr, n, dv):
    l = a.newlabel("pi")
    a("s_cmp_lg_u32 s3, 0")
    a(f"s_cbranch_scc1 {l}")
    addr(a)
    for i in range(n):
        a(f"buffer_load_dwordx2 v[{dv+2*i}:{dv+1+2*i}], v{14+i}, s[{SDBG}:{SDBG+3}], 0 offen sc1")
    a("s_mov_b64 exec, -1")
    a.label(l)


def wait_flags2(a, addr, n=1, dv=18, pre=False):
    l = a.newlabel("poll")
    c = a.newlabel("pollc")
    d = a.newlabel("polld")
    a("s_cmp_lg_u32 s3, 0")
    a(f"s_cbranch_scc1 {d}")
    addr(a)
    a(f"s_mov_b32 s{sCNT}, 20000")
    if pre:
        a(f"s_branch {c}")
    a.label(l)
    for i in range(n):
        a(f"buffer_load_dwordx2 v[{dv+2*i}:{dv+1+2*i}], v{14+i}, s[{SDBG}:{SDBG+3}], 0 offen sc1")
    a.label(c)
    a("s_waitcnt vmcnt(0)")
    a(f"v_cmp_ne_u64 vcc, s[{sN}:{sN+1}], v[{dv}:{dv+1}]")
    for i in range(1, n):
        a(f"v_cmp_ne_u64 s[48:49], s[{sN}:{sN+1}], v[{dv+2*i}:{dv+1+2*i}]")
        a(f"s_or_b64 vcc, vcc, s[48:49]")
    a(f"s_cbranch_vccz {d}")
    if SLEEP:
        a(f"s_sleep {SLEEP}")
    a(f"s_sub_u32 s{sCNT}, s{sCNT}, 1")
    a(f"s_cmp_lg_u32 s{sCNT}, 0")
    a(f"s_cbranch_scc1 {l}")
    a.label(d)
    a("s_mov_b64 exec, -1")
    a("s_barrier")


def addr_ln(a):
    a("v_lshlrev_b32 v14, 5, v1")
    a("v_add_u32 v15, 2048, v14")
    a("v_add_u32 v16, 4096, v14")


def addr_h(a):
    a(f"s_lshr_b32 s{sT0}, s{sST}, 1")
    a(f"s_lshl_b32 s{sT0}, s{sT0}, 7")
    a(f"s_add_u32 s{sT0}, s{sT0}, {FL_H}")
    a(f"v_lshl_add_u32 v14, v1, 5, s{sT0}")
    a("s_mov_b64 exec, 15")


def addr_u(a):
    a(f"s_lshl_b32 s{sT0}, s{sDT}, 10")
    a(f"s_add_u32 s{sT0}, s{sT0}, {FL_U}")
    a(f"v_lshl_add_u32 v14, v1, 5, s{sT0}")
    a(f"s_mov_b64 exec, {(1 << 22) - 1:#x}")


def ln_loads(a):
    srd(a, S0, 'x')
    srd(a, S1, 'gw')
    a(f"s_mul_i32 s{sFLG}, s{sXCD}, 24")
    a(f"s_mul_i32 s{sT1}, s{sXCD}, 20")
    a(f"s_add_u32 s{sT1}, s{sT1}, 16")
    a(f"s_cmp_ge_u32 s{sXCD}, 4")
    a(f"s_cselect_b32 s{sFLG}, s{sT1}, s{sFLG}")
    a(f"s_add_u32 s{sFLG}, s{sFLG}, s{sR}")
    a(f"s_mul_i32 s{sT2}, s{sFLG}, 3")
    a(f"s_add_u32 s{sT2}, s{sT2}, s3")
    a(f"s_min_u32 s{sT2}, s{sT2}, 511")
    a(f"s_lshl_b32 s{sT0}, s{sT2}, 12")
    a("v_lshlrev_b32 v30, 4, v1")
    l = a.newlabel("lnl")
    a("s_cmp_eq_u32 s3, 3")
    a(f"s_cbranch_scc1 {l}")
    for r in range(LNR):
        a(f"s_add_u32 s{sT1}, s{sT0}, {r*1024}")
        a.vm(f"buffer_load_dwordx4 v[{32+4*r}:{35+4*r}], v30, s[{S0}:{S0+3}], s{sT1} offen", "lnx")
    a.vm(f"buffer_load_dwordx4 v[48:51], v30, s[{S1}:{S1+3}], 0 offen", "lnx")
    a.label(l)
    srdws(a, S2, 'hln')
    srdws(a, S3, 'g')


def bu_touch2(a):
    a(f"s_cmp_ge_u32 s{sR}, 8")
    a(f"s_cselect_b32 s{S7}, s{KP['bim']}, s{KP['bre']}")
    a(f"s_cselect_b32 s{S7+1}, s{KP['bim']+1}, s{KP['bre']+1}")
    a(f"s_and_b32 s48, s{sXCD}, 1")
    a(f"s_lshl_b32 s48, s48, 18")
    a(f"s_mov_b32 s{S7+2}, {SZ['bre']}")
    a(f"s_xor_b32 s50, s{sXCD}, 1")
    a(f"s_lshl_b32 s50, s50, 18")
    a(f"s_cmp_ge_u32 s{sR}, 16")
    a(f"s_cselect_b32 s{S7}, s{KP['x']}, s{S7}")
    a(f"s_cselect_b32 s{S7+1}, s{KP['x']+1}, s{S7+1}")
    a(f"s_cselect_b32 s{S7+2}, {SZ['x']}, s{S7+2}")
    a(f"s_cselect_b32 s48, s50, s48")
    a(f"s_and_b32 s49, s{sR}, 7")
    a(f"s_and_b32 s{S7+1}, s{S7+1}, 0xffff")
    a(f"s_mov_b32 s{S7+3}, 0x00020000")
    a(f"s_lshl_b32 s49, s49, 2")
    a(f"s_add_u32 s49, s49, s3")
    a(f"s_lshl_b32 s49, s49, 13")
    a(f"s_add_u32 s48, s48, s49")
    a("v_lshlrev_b32 v18, 7, v1")
    a.vm(f"buffer_load_dword v5, v18, s[{S7}:{S7+3}], s48 offen")


def need_row(a, vn, vt):
    a(f"v_bfe_u32 v{vt}, v{vn}, 6, 2")
    a(f"v_lshlrev_b32 v{vt}, 9, v{vt}")
    a(f"v_and_or_b32 v{vt}, v{vn}, 63, v{vt}")
    a(f"v_lshrrev_b32 v{vn}, 8, v{vn}")
    a(f"v_and_b32 v{vn}, 7, v{vn}")
    a(f"v_lshl_or_b32 v{vn}, v{vn}, 6, v{vt}")


def w1_touch(a, t):
    a(f"s_lshl_b32 s{sT0}, s{sR}, 2")
    a(f"s_add_u32 s{sT0}, s{sT0}, s3")
    a(f"s_add_u32 s{sT0}, s{sT0}, {t*96}")
    a(f"s_mul_i32 s{sT0}, s{sT0}, 9")
    a("v_mul_u32_u24 v17, 37, v1")
    a("v_lshrrev_b32 v17, 8, v17")
    a("v_mul_u32_u24 v18, 7, v17")
    a("v_sub_u32 v18, v1, v18")
    a(f"v_add_u32 v17, s{sT0}, v17")
    need_row(a, 17, 16)
    a("v_mul_u32_u24 v17, 2752, v17")
    a("v_lshl_add_u32 v18, v18, 7, v17")
    if t == 2:
        l = a.newlabel("wt")
        a(f"s_cmp_ge_u32 s{sT0}, 2048")
        a(f"s_cbranch_scc1 {l}")
        a(f"buffer_load_dword v5, v18, s[{S4}:{S4+3}], s{sFB} offen")
        a.label(l)
    else:
        a.vm(f"buffer_load_dword v5, v18, s[{S4}:{S4+3}], s{sFB} offen")


def hln_touch(a):
    l = a.newlabel("ht")
    a(f"s_cmp_ge_u32 s{sR}, 20")
    a(f"s_cbranch_scc1 {l}")
    a(f"s_lshl_b32 s{sT0}, s{sR}, 2")
    a(f"s_add_u32 s{sT0}, s{sT0}, s3")
    a(f"s_lshl_b32 s{sT1}, s{sT0}, 4")
    a(f"s_and_b32 s{sT2}, s{sXCD}, 1")
    a(f"s_lshl_b32 s{sT2}, s{sT2}, 9")
    a("v_and_b32 v18, 3, v1")
    for t in range(2):
        a("v_lshrrev_b32 v17, 2, v1")
        a(f"v_add_u32 v17, s{sT1}, v17")
        if t:
            a(f"v_add_u32 v17, 1280, v17")
        need_row(a, 17, 16)
        a("v_lshlrev_b32 v17, 10, v17")
        a("v_lshl_add_u32 v17, v18, 7, v17")
        if t:
            a(f"s_cmp_ge_u32 s{sT0}, 48")
            a(f"s_cbranch_scc1 {l}")
        a(f"buffer_load_dword v5, v17, s[{S2}:{S2+3}], s{sT2} offen")
    a.label(l)


def u_touch(a):
    a(f"s_and_b32 s{sT0}, s{sR}, 7")
    a(f"s_lshl_b32 s{sT0}, s{sT0}, 2")
    a(f"s_add_u32 s{sT0}, s{sT0}, s3")
    a(f"s_lshl_b32 s{sT1}, s{sDT}, 5")
    a(f"s_add_u32 s{sT0}, s{sT0}, s{sT1}")
    a(f"s_mul_i32 s{sT0}, s{sT0}, {2*URS}")
    a("v_lshlrev_b32 v17, 7, v1")
    a(f"s_mov_b32 exec_hi, 0xfff")
    a.vm(f"buffer_load_dword v5, v17, s[{S1}:{S1+3}], s{sT0} offen")
    a("s_mov_b64 exec, -1")


def h_touch(a):
    a(f"s_lshr_b32 s{sT0}, s{sR}, 3")
    a(f"s_lshl_b32 s{sT0}, s{sT0}, 2")
    a(f"s_add_u32 s{sT0}, s{sT0}, s3")
    a(f"s_lshl_b32 s{sT1}, s{sST}, 4")
    a(f"s_add_u32 s{sT0}, s{sT0}, s{sT1}")
    a(f"s_lshl_b32 s{sT0}, s{sT0}, 13")
    a("v_lshlrev_b32 v17, 7, v1")
    a.vm(f"buffer_load_dword v5, v17, s[{S0}:{S0+3}], s{sT0} offen")


class Sprinkle(Asm):
    pass


def sprinkled(a, fn, groups, every, skip=0):
    t = Asm()
    t.uid = a.uid
    marks = []
    orig_vm = t.vm

    def vm(s, tag=None):
        marks.append(len(t.lines))
        t(s)
        t.vmq.append(tag)
    t.vm = vm
    fn(t)
    a.uid = t.uid
    cnt = 0
    tags = iter(t.vmq)
    groups = list(groups)
    exec_full = True
    for idx, l in enumerate(t.lines):
        if idx in marks:
            a.lines.append(l)
            a.vmq.append(next(tags))
        else:
            a.lines.append(l)
        if "exec" in l:
            exec_full = "exec, -1" in l
        cnt += 1
        s = l.strip()
        if groups and cnt >= every and idx >= skip and exec_full and s.startswith("v_") and not s.startswith(("v_cmp", "v_readlane", "v_exp", "v_rcp", "v_sqrt", "v_sin", "v_cos")) and "dpp" not in s:
            emit_groups(a, [groups.pop(0)])
            cnt = 0
    emit_groups(a, groups)


import copy
W1PRE = int(os.environ.get('W1PRE', '0'))
W1B = int(os.environ.get('W1B', '2'))
AW = int(os.environ.get('AW', '5'))
ASC = int(os.environ.get('ASC', '3'))
HG = int(os.environ.get('HG', '9'))
UG = int(os.environ.get('UG', '1'))
sOW, sOU, sCU = 63, 82, 83
AFIRST = int(os.environ.get('AFIRST', '1'))
PFD = int(os.environ.get('PFD', '0'))
ATT = int(os.environ.get('ATT', '1'))
EPRE = int(os.environ.get('EPRE', '2'))
LPF = int(os.environ.get('LPF', '1'))


class Item:
    def __init__(self, name, op, st, kind='p', rf=None, dst=None, mf=None, opt=False):
        self.name, self.op, self.st, self.kind, self.rf, self.dst, self.mf, self.opt = name, op, st, kind, rf, dst, mf, opt
        self.slot = None
        self.extra = None


class Gate:
    def __init__(self, fn, ok):
        self.fn, self.ok = fn, ok


class Ring:
    def __init__(self, a):
        self.a = a
        self.free = list(range(NSLOT))

    def groups(self, it):
        it.slot = self.free.pop(0)
        return dma_groups(it.op, it.st, it.slot * SLOT, sWB, it.name)

    def issue(self, it):
        emit_groups(self.a, self.groups(it))

    def release(self, it):
        self.free.append(it.slot)

    def pump(self, queue, state, maxn=99):
        out = []
        while queue and maxn > 0:
            x = queue[0]
            if isinstance(x, Gate):
                if not x.ok(state) or not self.free:
                    break
                emit_groups(self.a, out)
                out = []
                x.fn()
            else:
                if not self.free:
                    break
                out += self.groups(x)
                maxn -= 1
            queue.pop(0)
        return out


def consume(a, R, it, prev=None):
    a.vwait(it.name)
    if it.kind == 'p':
        if it.opt:
            l = a.newlabel("co")
            a("s_cmp_ge_u32 s3, 2")
            a(f"s_cbranch_scc1 {l}")
        for j in range(4):
            reads(a, it.op, it.slot * SLOT, j, it.dst + j * 8, it.rf)
        a("s_waitcnt lgkmcnt(0)")
        if it.opt:
            a.label(l)
        R.release(it)
    else:
        op, st, dst = it.op, it.st, it.dst
        sr, si = prev.slot * SLOT, it.slot * SLOT
        for jh in range(2):
            for jj in range(2):
                reads(a, op, sr, jh * 2 + jj, 32 + jj * 16)
                reads(a, op, si, jh * 2 + jj, 40 + jj * 16)
            for jj in range(2):
                a(f"s_waitcnt lgkmcnt({4 - 4 * jj})")
                jp = jh * 2 + jj
                hs = 2 * st + (jp >> 1)
                for q in range(2):
                    for h in range(2):
                        j = 2 * (jp & 1) + h
                        d = dst + hs * 32 + j * 8 + q * 4
                        for r in range(2):
                            re = 32 + jj * 16 + q * 4 + 2 * h + r
                            im = re + 8
                            a(f"v_perm_b32 v{d+2*r}, v{im}, v{re}, s{sP0}")
                            a(f"v_perm_b32 v{d+2*r+1}, v{im}, v{re}, s{sP1}")
        R.release(prev)
        R.release(it)


def stream3(a, R, stages, queue, sbase=None, hook=None, keep=0):
    n = len(stages)

    def nrd(g):
        return 2 if stages[g // 4].op.kind == 'KC' else 4

    def rl(g):
        i, j = divmod(g, 4)
        return read_lines(stages[i].op, stages[i].slot * SLOT, j, FB[g % 4])
    a.vwait(stages[0].name)
    if sbase is not None:
        a.stamp(sbase)
    for l in rl(0) + rl(1):
        a(l)
    pend = []
    lskip = None
    for g in range(4 * n):
        i, j = divmod(g, 4)
        it = stages[i]
        first = False
        if j == 0:
            assert not pend
            if it.opt:
                lskip = a.newlabel("sk")
                a("s_cmp_ge_u32 s3, 2")
                a(f"s_cbranch_scc1 {lskip}")
            first = True
        rd = []
        if g + 2 < 4 * n:
            if j == 2:
                a.vwait(stages[i + 1].name)
                if sbase is not None:
                    a.stamp(sbase + i + 1)
        a(f"s_waitcnt lgkmcnt({nrd(g + 1) if g + 1 < 4 * n else 0})")
        if first:
            if i > 0 and i - 1 < n - keep:
                R.release(stages[i - 1])
            if i > 0 and stages[i - 1].extra:
                R.release(stages[i - 1].extra)
            if not it.opt:
                pend = R.pump(queue, i, 2)
            per = len(pend) // 4
        if hook:
            hook(i, j)
        if j == 1 and it.extra:
            x = it.extra
            a.vwait(x.name)
            if x.opt:
                lx = a.newlabel("xo")
                a("s_cmp_ge_u32 s3, 2")
                a(f"s_cbranch_scc1 {lx}")
            for jj in range(4):
                reads(a, x.op, x.slot * SLOT, jj, x.dst + jj * 8, x.rf)
            if x.opt:
                a.label(lx)
        if g + 2 < 4 * n:
            rd = rl(g + 2)
        nr = len(rd)
        for k, l in enumerate(it.mf(it.st, j, FB[g % 4])):
            a(l)
            for r in (rd[k:k + 1] if nr == 4 else (rd[k // 2:k // 2 + 1] if k % 2 == 0 else [])):
                a(r)
            if pend and (per == 4 or k % 2 == 1):
                emit_groups(a, [pend.pop(0)])
    if lskip:
        a.label(lskip)
        a("s_waitcnt lgkmcnt(0)")
    if keep == 0:
        R.release(stages[-1])
    assert not pend


def write_partial2(a, rf, accbase, o0, o1, addr=True):
    if addr:
        partial_addr(a)
    for qm in range(2):
        for qn in range(2):
            for j in range(4):
                acc = accbase + (qm * 2 + qn) * 16 + 4 * j
                a(f"ds_write_b128 v{40 + qm * 4 + j}, {rf}[{acc}:{acc+3}] offset:{(o0, o1)[qn]}")


def read_partials2(a, lst):
    a("v_lshrrev_b32 v14, 2, v0")
    a("v_and_b32 v16, 3, v0")
    a("v_lshlrev_b32 v15, 2, v16")
    a("v_and_b32 v17, 15, v14")
    a("v_xor_b32 v15, v15, v17")
    a("v_lshlrev_b32 v15, 4, v15")
    a("v_and_b32 v17, 31, v14")
    a("v_lshl_add_u32 v40, v17, 8, v15")
    o0, o1, _ = lst[0]
    a("s_cmp_ge_u32 s3, 2")
    a(f"s_cselect_b32 s{sT0}, {o1}, {o0}")
    a(f"v_add_u32 v40, s{sT0}, v40")
    for i in range(1, 4):
        a(f"v_xor_b32 v{40+i}, {i << 4}, v40")
    for i in range(4):
        a(f"v_add_u32 v{44+i}, {2*WREG}, v{40+i}")
    for p0, p1, dst in lst:
        assert p1 - p0 == o1 - o0 and p0 >= o0
        for w in range(4):
            for i in range(4):
                d = dst + w * 16 + i * 4
                a(f"ds_read_b128 v[{d}:{d+3}], v{40 + (w >> 1) * 4 + i} offset:{(w&1)*WREG + p0 - o0}")


def nonce_get(a, nv):
    lp = a.newlabel("np")
    ld = a.newlabel("npd")
    a(f"s_mov_b32 s{sCNT}, 20000")
    a.label(lp)
    a(f"v_readfirstlane_b32 s{sN}, v{nv}")
    a(f"v_readfirstlane_b32 s{sN+1}, v{nv+1}")
    a(f"s_cmp_lg_u32 s{sN}, 0")
    a(f"s_cbranch_scc1 {ld}")
    a(f"buffer_load_dwordx2 v[{nv}:{nv+1}], off, s[{SDBG}:{SDBG+3}], 0 sc1")
    a("s_waitcnt vmcnt(0)")
    a(f"s_sub_u32 s{sCNT}, s{sCNT}, 1")
    a(f"s_cmp_lg_u32 s{sCNT}, 0")
    a(f"s_cbranch_scc1 {lp}")
    a.label(ld)
    srdws(a, SDBG, 'fl')


def wave_flag(a, base, only0=False):
    if only0:
        l = a.newlabel("wf")
        a("s_cmp_lg_u32 s3, 0")
        a(f"s_cbranch_scc1 {l}")
    a("s_mov_b64 exec, 1")
    a(f"s_lshl_b32 s{sCNT}, s{sFLG}, 5")
    if base:
        a(f"s_add_u32 s{sCNT}, s{sCNT}, {base}")
    a(f"v_mov_b32 v14, s{sN}")
    a(f"v_mov_b32 v15, s{sN+1}")
    s = f"buffer_store_dwordx2 v[14:15], off, s[{SDBG}:{SDBG+3}], s{sCNT} sc1"
    if only0:
        a(s)
    else:
        a.vm(s)
    a("s_mov_b64 exec, -1")
    if only0:
        a.label(l)


def gaddr_ln(a):
    a(f"s_mul_i32 s{sT0}, s3, 43")
    a(f"s_add_u32 s{sT1}, s3, 1")
    a(f"s_lshr_b32 s{sT1}, s{sT1}, 1")
    a(f"s_min_u32 s{sT1}, s{sT1}, 1")
    a(f"s_sub_u32 s{sT0}, s{sT0}, s{sT1}")
    a(f"s_lshl_b32 s{sT0}, s{sT0}, 5")
    a(f"v_lshl_add_u32 v14, v1, 5, s{sT0}")
    a(f"s_mov_b32 exec_hi, 0xfff")


def gaddr_h(a):
    a(f"s_lshr_b32 s{sT0}, s{sST}, 1")
    a(f"s_lshl_b32 s{sT0}, s{sT0}, 2")
    a(f"s_add_u32 s{sT0}, s{sT0}, s3")
    a(f"s_lshl_b32 s{sT0}, s{sT0}, 7")
    a(f"s_add_u32 s{sT0}, s{sT0}, {FL_H}")
    a(f"v_lshl_add_u32 v14, v1, 5, s{sT0}")
    a("s_mov_b64 exec, 15")


def gaddr_u(a):
    mix_start(a, sT1)
    a(f"s_mul_i32 s{sT0}, s{sDT}, 22")
    a(f"s_add_u32 s{sT0}, s{sT0}, s{sT1}")
    a(f"s_lshl_b32 s{sT0}, s{sT0}, 7")
    a(f"s_add_u32 s{sT0}, s{sT0}, {FL_U}")
    a(f"v_lshl_add_u32 v14, v1, 5, s{sT0}")
    a("s_cmp_ge_u32 s3, 2")
    a(f"s_cselect_b32 s{sT1}, 20, 24")
    a(f"s_bfm_b32 exec_lo, s{sT1}, 0")
    a("s_mov_b32 exec_hi, 0")


def gate_issue(a, addr, dv, tag):
    addr(a)
    a.vm(f"buffer_load_dwordx2 v[{dv}:{dv+1}], v14, s[{SDBG}:{SDBG+3}], 0 offen sc1", tag)
    a("s_mov_b64 exec, -1")


def gate(a, addr, dv, tag=None):
    l = a.newlabel("poll")
    c = a.newlabel("pollc")
    d = a.newlabel("polld")
    if tag is not None:
        a.vwait(tag)
    addr(a)
    a(f"s_mov_b32 s{sCNT}, 20000")
    if tag is not None:
        a(f"s_branch {c}")
    a.label(l)
    a(f"buffer_load_dwordx2 v[{dv}:{dv+1}], v14, s[{SDBG}:{SDBG+3}], 0 offen sc1")
    a("s_waitcnt vmcnt(0)")
    a.label(c)
    a(f"v_cmp_ne_u64 vcc, s[{sN}:{sN+1}], v[{dv}:{dv+1}]")
    a(f"s_cbranch_vccz {d}")
    if SLEEP:
        a(f"s_sleep {SLEEP}")
    a(f"s_sub_u32 s{sCNT}, s{sCNT}, 1")
    a(f"s_cmp_lg_u32 s{sCNT}, 0")
    a(f"s_cbranch_scc1 {l}")
    a.label(d)
    a("s_mov_b64 exec, -1")


def weight_items(a, km_frag, pfx):
    ci = make_c_ops(a)
    C = [Item(f"{pfx}c{i}", op, st, kind, rf, dst) for i, (kind, op, st, rf, dst) in enumerate(ci)]
    opW2 = make_w2_op(a, km_frag)
    a("s_cmp_ge_u32 s3, 2")
    a(f"s_cselect_b32 s{sOW}, 0x40000000, 0")
    a(f"s_add_u32 s{sOW}, s{sOW}, s{sC2}")
    opo = copy.copy(opW2)
    opo.scur = sOW
    W2 = [Item(f"{pfx}w{st}", opW2, st, 'p', 'a', st * 32) for st in range(5)]
    W2.append(Item(f"{pfx}w5", opo, 5, 'p', 'a', 160, opt=True))
    return C, W2


def mfs(st, j, fr):
    r = []
    for qm in range(2):
        for qn in range(2):
            acc = 192 + (qm * 2 + qn) * 16
            A = 128 + st * 32 + j * 8 + qm * 4
            B = fr + qn * 4
            c = "0" if (st == 0 and j == 0) else f"a[{acc}:{acc+15}]"
            r.append(f"v_mfma_f32_32x32x16_bf16 a[{acc}:{acc+15}], v[{A}:{A+3}], v[{B}:{B+3}], {c}")
    return r


def mfu(st, j, fr):
    r = []
    for qm in range(2):
        for qn in range(2):
            acc = 64 + (qm * 2 + qn) * 16
            A = fr + qm * 4
            B = st * 32 + j * 8 + qn * 4
            c = "0" if (st == 0 and j == 0) else f"v[{acc}:{acc+15}]"
            r.append(f"v_mfma_f32_32x32x16_bf16 v[{acc}:{acc+15}], v[{A}:{A+3}], a[{B}:{B+3}], {c}")
    return r


def tail(a, R, pending, to_issue, pfx, attach=()):
    srdws(a, S0, 'h')
    srdws(a, S1, 'u')
    a(f"s_lshl_b32 s{sC0}, s{sST}, 17")
    a(f"s_lshl_b32 s{sT0}, s3, 9")
    a(f"s_add_u32 s{sC0}, s{sC0}, s{sT0}")
    mix_start(a, sCU)
    a(f"s_lshl_b32 s{sCU}, s{sCU}, 7")
    a(f"s_mul_i32 s{sT0}, s{sDT}, {64*URS}")
    a(f"s_add_u32 s{sCU}, s{sCU}, s{sT0}")
    a("s_cmp_ge_u32 s3, 2")
    a(f"s_cselect_b32 s{sOU}, 0x40000000, 0")
    a(f"s_add_u32 s{sOU}, s{sOU}, s{sCU}")
    opHs = Op('KC', [S0] * 8, 2048, sC0, 28, 24, hmap=True)
    opU = Op('KC', [S1] * 8, URS, sCU, 2, 6)
    opUo = copy.copy(opU)
    opUo.scur = sOU
    setup_dma(a, opHs)
    setup_frag(a, opHs, sWB)
    Hs = [Item(f"{pfx}s{st}", opHs, st, mf=mfs) for st in range(4)]
    Us = [Item(f"{pfx}u{st}", opU, st, mf=mfu) for st in range(5)] + [Item(f"{pfx}u5", opUo, 5, mf=mfu, opt=True)]
    EP = 192
    st8 = {'hp': False, 'up': False}

    def gh():
        gate(a, gaddr_h, 18, "hp" if st8['hp'] else None)
        a.stamp(7)

    def gu():
        gate(a, gaddr_u, 18, "up" if st8['up'] else None)
        a.stamp(9)
        setup_dma(a, opU)
    seq = pending + to_issue
    attach = list(attach)
    hq = []
    for i, h in enumerate(Hs):
        if i < len(attach):
            h.extra = attach[i]
        hq.append(h)
        if i + 1 < len(attach):
            hq.append(attach[i + 1])
    queue = list(to_issue) + attach[:1] + [Gate(gh, lambda s: s[0] == 'r' and s[1] <= HG if isinstance(s, tuple) else True)] + hq + \
        [Gate(gu, lambda s: (not isinstance(s, tuple)) and s >= UG)] + Us
    for k, it in enumerate(seq):
        rem = len(seq) - k
        if rem == min(HG + 1, len(seq)):
            gate_issue(a, gaddr_h, 18, "hp")
            st8['hp'] = True
        emit_groups(a, R.pump(queue, ('r', rem)))
        if it.kind == 'cr':
            continue
        consume(a, R, it, seq[k - 1] if it.kind == 'ci' else None)
        a.stamp(48 + k)
    emit_groups(a, R.pump(queue, ('r', 0)))
    a.stamp(6)

    def epi_loads():
        srd(a, S2, 'x')
        srd(a, S3, 'dsk')
        srd(a, S4, 'b2')
        srdws(a, S5, 'g')
        srd(a, S6, 'out')
        a("v_lshrrev_b32 v20, 2, v0")
        a(f"s_lshl_b32 s{sT0}, s{sST}, 6")
        a(f"v_add_u32 v20, s{sT0}, v20")
        a("v_and_b32 v21, 3, v0")
        a("v_lshlrev_b32 v21, 4, v21")
        a(f"s_lshl_b32 s{sT0}, s{sDT}, 6")
        a(f"v_add_u32 v21, s{sT0}, v21")
        a("v_lshl_add_u32 v22, v20, 9, v21")
        a("v_lshlrev_b32 v23, 1, v22")
        a.vm(f"buffer_load_dwordx4 v[{EP}:{EP+3}], v23, s[{S2}:{S2+3}], 0 offen")
        a.vm(f"buffer_load_dwordx4 v[{EP+4}:{EP+7}], v23, s[{S2}:{S2+3}], 0 offen offset:16")
        a("v_lshlrev_b32 v23, 1, v21")
        a.vm(f"buffer_load_dwordx4 v[{EP+8}:{EP+11}], v23, s[{S3}:{S3+3}], 0 offen")
        a.vm(f"buffer_load_dwordx4 v[{EP+12}:{EP+15}], v23, s[{S3}:{S3+3}], 0 offen offset:16")
        a("v_lshlrev_b32 v23, 1, v20")
        a.vm(f"buffer_load_ushort v{EP+16}, v23, s[{S4}:{S4+3}], 0 offen")
        a("v_lshrrev_b32 v23, 2, v20")
        a("v_and_b32 v19, 3, v20")
        a("v_lshlrev_b32 v19, 2, v19")
        a("v_lshl_add_u32 v23, v23, 7, v19")
        a.vm(f"buffer_load_dword v{EP+17}, v23, s[{S5}:{S5+3}], 0 offen sc1")

    def hk(i, j):
        if i == UG - 1 and j == 1:
            gate_issue(a, gaddr_u, 18, "up")
            st8['up'] = True
        if i == 6 and j == 1:
            epi_loads()
        if i == 4 and j == 0:
            a.stamp(8)
    stream3(a, R, Hs + Us, queue, 24, hk)
    assert not queue
    a.stamp(10)
    partial_addr(a)
    a("s_nop 7")
    write_partial2(a, 'a', 192, 0, SLOT, False)
    write_partial2(a, 'v', 64, 2 * SLOT, 3 * SLOT, False)
    a("s_waitcnt lgkmcnt(0)")
    a("s_barrier")
    read_partials2(a, [(0, SLOT, 128), (2 * SLOT, 3 * SLOT, 64)])
    a("s_waitcnt lgkmcnt(15)")
    sum_partials(a, 128, 128)
    a("s_waitcnt lgkmcnt(0)")
    sum_partials(a, 64, 64)
    MX, SS = 64, 128
    a("s_waitcnt vmcnt(0)")
    B2, G, OG = EP + 16, EP + 17, EP + 18
    a(f"v_lshlrev_b32 v{B2}, 16, v{B2}")
    a(f"v_sub_f32 v{OG}, 1.0, v{G}")
    bf16r(a, OG, OG)
    T = 32
    a("v_lshlrev_b32 v23, 2, v22")
    for k in range(8):
        a(f"v_cvt_pk_bf16_f32 v{T}, v{MX+2*k}, v{MX+1+2*k}")
        a(f"v_lshlrev_b32 v{T+1}, 16, v{T}")
        a(f"v_and_b32 v{T}, 0xffff0000, v{T}")
        a(f"v_add_f32 v{T+1}, v{T+1}, v{B2}")
        a(f"v_add_f32 v{T}, v{T}, v{B2}")
        a(f"v_cvt_pk_bf16_f32 v{T}, v{T+1}, v{T}")
        a(f"v_lshlrev_b32 v{T+1}, 16, v{T}")
        a(f"v_and_b32 v{T}, 0xffff0000, v{T}")
        a(f"v_mul_f32 v{T+1}, v{T+1}, v{OG}")
        a(f"v_mul_f32 v{T}, v{T}, v{OG}")
        a(f"v_cvt_pk_bf16_f32 v{T}, v{T+1}, v{T}")
        a(f"v_lshlrev_b32 v{MX+2*k}, 16, v{T}")
        a(f"v_and_b32 v{MX+1+2*k}, 0xffff0000, v{T}")
        a(f"v_lshlrev_b32 v{T+1}, 16, v{EP+k}")
        a(f"v_and_b32 v{T}, 0xffff0000, v{EP+k}")
        a(f"v_lshlrev_b32 v{T+2}, 16, v{EP+8+k}")
        a(f"v_and_b32 v{T+3}, 0xffff0000, v{EP+8+k}")
        a(f"v_mul_f32 v{T+1}, v{T+1}, v{T+2}")
        a(f"v_mul_f32 v{T}, v{T}, v{T+3}")
        a(f"v_cvt_pk_bf16_f32 v{T}, v{T+1}, v{T}")
        a(f"v_lshlrev_b32 v{T+1}, 16, v{T}")
        a(f"v_and_b32 v{T}, 0xffff0000, v{T}")
        a(f"v_fma_f32 v{T+1}, 2.0, v{SS+2*k}, v{T+1}")
        a(f"v_fma_f32 v{T}, 2.0, v{SS+1+2*k}, v{T}")
        a(f"v_mul_f32 v{T+1}, v{T+1}, v{G}")
        a(f"v_mul_f32 v{T}, v{T}, v{G}")
        a(f"v_add_f32 v{MX+2*k}, v{MX+2*k}, v{T+1}")
        a(f"v_add_f32 v{MX+1+2*k}, v{MX+1+2*k}, v{T}")
        if k % 2 == 1:
            i = k // 2
            a(f"buffer_store_dwordx4 v[{MX+4*i}:{MX+3+4*i}], v23, s[{S6}:{S6+3}], 0 offen offset:{16*i}")
    if STAMPS:
        a("s_waitcnt vmcnt(0)")
        a.stamp(11)
        a.stamp_flush()
    a("s_endpgm")


def ln_phase(a, R, W):
    l3, lj = a.newlabel("ln3"), a.newlabel("lnj")
    grp = [R.groups(W[i]) for i in range(5)]
    a("s_cmp_eq_u32 s3, 3")
    a(f"s_cbranch_scc1 {l3}")
    a.vwait("lnx")
    a.stamp(12)
    sprinkled(a, ln_compute, sum(grp[:W1PRE], []), 12)
    a.stamp(13)
    emit_groups(a, sum(grp[W1PRE:W1B], []))
    a.vwait("lnst")
    a(f"s_branch {lj}")
    a.label(l3)
    if PFD:
        a(f"s_sleep {PFD}")
    w1_pf(a)
    a(f"s_waitcnt vmcnt(6)")
    emit_groups(a, sum(grp[:W1B], []))
    a.label(lj)
    a.vmq = [g[2] for g in sum(grp[:W1B], [])]
    nonce_get(a, 28)
    a("s_barrier")
    wave_flag(a, FL_LN, True)
    emit_groups(a, sum(grp[W1B:], []))


def w1_pf(a):
    a(f"s_lshr_b32 s{sT0}, s{sR}, 2")
    a(f"s_sub_u32 s{sT0}, s{sA}, s{sT0}")
    a(f"s_lshl_b32 s{sT0}, s{sT0}, 7")
    a(f"s_and_b32 s{sT1}, s{sXCD}, 1")
    a(f"s_mul_i32 s{sT1}, s{sT1}, {1024*2752}")
    a(f"s_add_u32 s{sT0}, s{sT0}, s{sT1}")
    a(f"s_min_u32 s{sT1}, s{sR}, 19")
    a(f"s_mul_i32 s{sT1}, s{sT1}, 9")
    a("v_mul_u32_u24 v17, 37, v1")
    a("v_lshrrev_b32 v17, 8, v17")
    a("v_mul_u32_u24 v18, 7, v17")
    a("v_sub_u32 v18, v1, v18")
    a(f"v_add_u32 v17, s{sT1}, v17")
    for t in range(6):
        a(f"v_add_u32 v14, {t*180}, v17")
        a("v_min_u32 v14, 1023, v14")
        a("v_bfe_u32 v15, v14, 6, 1")
        a("v_lshlrev_b32 v15, 9, v15")
        a("v_and_or_b32 v15, v14, 63, v15")
        a("v_lshrrev_b32 v14, 7, v14")
        a("v_lshl_or_b32 v14, v14, 6, v15")
        a("v_mul_u32_u24 v14, 2752, v14")
        a("v_lshl_add_u32 v14, v18, 7, v14")
        a(f"buffer_load_dword v5, v14, s[{S4}:{S4+3}], s{sT0} offen")


def l_pf(a):
    srd(a, S5, 'cre')
    srd(a, S7, 'cim')
    srd(a, S6, 'w2')
    a(f"s_sub_u32 s{sT0}, s{sXCD}, 4")
    a(f"s_lshl_b32 s{sT0}, s{sT0}, 2")
    a(f"s_add_u32 s{sT0}, s{sT0}, s{sR}")
    a(f"s_sub_u32 s{sT0}, s{sT0}, 20")
    a(f"s_lshl_b32 s{sT0}, s{sT0}, 2")
    a(f"s_add_u32 s{sT0}, s{sT0}, s3")
    a(f"s_lshl_b32 s{sT1}, s{sT0}, 13")
    a("v_lshlrev_b32 v14, 7, v1")
    a("v_lshrrev_b32 v15, 5, v1")
    a("v_and_b32 v16, 31, v1")
    a("v_lshlrev_b32 v16, 7, v16")
    a("v_lshl_add_u32 v15, v15, 12, v16")
    a(f"s_lshr_b32 s{sT2}, s{sT0}, 5")
    a(f"s_lshl_b32 s{sT3}, s{sT0}, 1")
    a(f"s_and_b32 s{sT3}, s{sT3}, 63")
    a(f"s_mul_i32 s{sT4}, s{sT2}, {6*64}")
    a(f"s_add_u32 s{sT4}, s{sT4}, s{sT3}")
    a(f"s_lshl_b32 s{sT4}, s{sT4}, 12")
    a(f"s_mul_i32 s{sT2}, s{sT2}, {5*64}")
    a(f"s_add_u32 s{sT2}, s{sT2}, s{sT3}")
    a(f"s_add_u32 s{sT2}, s{sT2}, {12*64}")
    a(f"s_lshl_b32 s{sT2}, s{sT2}, 12")
    for t in range(11):
        if t == 2:
            a(f"buffer_load_dword v5, v14, s[{S5}:{S5+3}], s{sT1} offen")
            a(f"buffer_load_dword v5, v14, s[{S7}:{S7+3}], s{sT1} offen")
        a(f"s_add_u32 s{sT}, s{(sT4, sT2)[t & 1]}, {(t >> 1) * 64 * 4096}")
        a(f"buffer_load_dword v5, v15, s[{S6}:{S6+3}], s{sT} offen")


def kernel(a):
    name = NAME + "_kernel"
    a.raw(f".globl {name}")
    a.raw(".p2align 8")
    a.raw(f".type {name},@function")
    a.label(name)
    a("s_cmp_ge_u32 s2, 256")
    a("s_cbranch_scc1 L_end")
    a("s_load_dwordx16 s[64:79], s[0:1], 0")
    a("s_load_dwordx16 s[80:95], s[0:1], 64")
    a("s_load_dwordx4 s[96:99], s[0:1], 128")
    a("v_and_b32 v1, 63, v0")
    a("v_lshrrev_b32 v2, 6, v0")
    if STAMPS:
        a("v_mov_b32 v31, 0")
    a(f"s_and_b32 s{sXCD}, s2, 7")
    a(f"s_lshr_b32 s{sR}, s2, 3")
    if AFIRST:
        a(f"s_add_u32 s{sR}, s{sR}, 24")
        a(f"s_and_b32 s{sR}, s{sR}, 31")
    a("v_readfirstlane_b32 s3, v2")
    a(f"s_lshr_b32 s{sST}, s{sXCD}, 1")
    a(f"s_lshl_b32 s{sST}, s{sST}, 3")
    a(f"s_and_b32 s{sT0}, s{sR}, 7")
    a(f"s_add_u32 s{sST}, s{sST}, s{sT0}")
    a(f"s_and_b32 s{sDT}, s{sXCD}, 1")
    a(f"s_lshl_b32 s{sDT}, s{sDT}, 2")
    a(f"s_lshr_b32 s{sT0}, s{sR}, 3")
    a(f"s_add_u32 s{sDT}, s{sDT}, s{sT0}")
    a(f"s_mul_i32 s{sWB}, s3, {WREG}")
    a("s_waitcnt lgkmcnt(0)")
    a.stamp(0)
    a.cstamp(62)
    srd(a, SDBG, 'dbg')
    a("s_lshl_b32 s48, s2, 2")
    a("s_add_u32 s48, s48, s3")
    a("s_cmp_lg_u32 s48, 0")
    a("s_cbranch_scc1 L_nonw")
    a(f"s_memrealtime s[{sN}:{sN+1}]")
    a("s_mov_b64 exec, 1")
    a("s_waitcnt lgkmcnt(0)")
    a(f"s_or_b32 s{sN}, s{sN}, 1")
    a(f"v_mov_b32 v14, s{sN}")
    a(f"v_mov_b32 v15, s{sN+1}")
    a(f"buffer_store_dwordx2 v[14:15], off, s[{SDBG}:{SDBG+3}], 0 sc1")
    a("s_mov_b64 exec, -1")
    a.label("L_nonw")
    a(f"s_cmp_ge_u32 s{sR}, 24")
    a("s_cbranch_scc1 L_apath")
    a(f"s_cmp_ge_u32 s{sXCD}, 4")
    a(f"s_cselect_b32 s{sT4}, 20, 24")
    a(f"s_cmp_ge_u32 s{sR}, s{sT4}")
    a("s_cbranch_scc1 L_lpath")
    ln_loads(a)
    bu_touch2(a)
    a.vm(f"buffer_load_dwordx2 v[28:29], off, s[{SDBG}:{SDBG+3}], 0 sc1")
    a(f"s_lshr_b32 s{sT3}, s{sXCD}, 1")
    a(f"s_mul_i32 s{sA}, s{sT3}, 6")
    a(f"s_cmp_eq_u32 s{sT3}, 3")
    a(f"s_cselect_b32 s{sA}, 17, s{sA}")
    a(f"s_lshr_b32 s{sT3}, s{sR}, 2")
    a(f"s_add_u32 s{sA}, s{sA}, s{sT3}")
    a(f"s_and_b32 s{sB}, s{sXCD}, 1")
    a(f"s_lshl_b32 s{sB}, s{sB}, 2")
    a(f"s_and_b32 s{sT4}, s{sR}, 3")
    a(f"s_add_u32 s{sB}, s{sB}, s{sT4}")

    srd(a, S4, 'w1')
    a(f"s_mul_i32 s{sC0}, s3, {512*2752}")
    a(f"s_lshl_b32 s{sT1}, s{sA}, 7")
    a(f"s_add_u32 s{sC0}, s{sC0}, s{sT1}")
    opW1 = Op('KM', [S4] * 8, 2752, sC0, 4, 10)
    setup_dma(a, opW1)
    R = Ring(a)
    W = [Item(f"g{st}", opW1, st, 'p', 'a', st * 32) for st in range(8)]
    setup_frag(a, opW1, sWB)
    ln_phase(a, R, W)
    a.stamp(1)
    a(f"s_mul_i32 s{sFLG}, s{sB}, 22")
    a(f"s_add_u32 s{sFLG}, s{sFLG}, s{sA}")
    a(f"s_lshl_b32 s{sFLG}, s{sFLG}, 2")
    a(f"s_add_u32 s{sFLG}, s{sFLG}, s3")
    C, W2 = weight_items(a, False, "G")
    srd(a, S1, 'b1')
    a("v_and_b32 v19, 3, v0")
    a("v_lshlrev_b32 v19, 5, v19")
    a(f"s_lshl_b32 s{sT1}, s{sA}, 7")
    a.vm(f"buffer_load_dwordx4 v[20:23], v19, s[{S1}:{S1+3}], s{sT1} offen")
    a.vm(f"buffer_load_dwordx4 v[24:27], v19, s[{S1}:{S1+3}], s{sT1} offen offset:16")
    srdws(a, S3, 'u')
    a(f"s_lshl_b32 s{sC3}, s3, 19")
    a(f"s_lshl_b32 s{sT1}, s{sB}, 7")
    a(f"s_add_u32 s{sC3}, s{sC3}, s{sT1}")
    opH = Op('KM', [S2] * 8, 1024, sC3, 13, 10)
    setup_dma(a, opH)

    def mf1(st, j, fr):
        r = []
        for qm in range(2):
            for qn in range(2):
                acc = 64 + (qm * 2 + qn) * 16
                A = st * 32 + j * 8 + qm * 4
                B = fr + qn * 4
                c = "0" if (st == 0 and j == 0) else f"v[{acc}:{acc+15}]"
                r.append(f"v_mfma_f32_32x32x16_bf16 v[{acc}:{acc+15}], a[{A}:{A+3}], v[{B}:{B+3}], {c}")
        return r
    Hn = [Item(f"h{st}", opH, st, mf=mf1) for st in range(8)]
    for i in range(8):
        consume(a, R, W[i])
        a.stamp(36 + i)
        if i < 3:
            R.issue(W[i + 5])
        if i == 2:
            gate_issue(a, gaddr_ln, 18, "lp")
        if i == 3:
            gate(a, gaddr_ln, 18, "lp")
            a.stamp(3)
        if i >= 3:
            R.issue(Hn[i - 3])
    a.stamp(2)
    stream3(a, R, Hn, Hn[5:] + W2[:3], 16, None, keep=2)
    a.stamp(4)
    p0, p1 = Hn[6].slot * SLOT, Hn[7].slot * SLOT
    partial_addr(a)
    a("s_nop 7")
    write_partial2(a, 'v', 64, p0, p1, False)
    a("s_waitcnt lgkmcnt(0)")
    a("s_barrier")
    read_partials2(a, [(p0, p1, 64)])
    a("s_waitcnt lgkmcnt(0)")
    sum_partials(a, 64, 64)
    for k in range(8):
        a(f"v_cvt_pk_bf16_f32 v80, v{64+2*k}, v{65+2*k}")
        a(f"v_lshlrev_b32 v81, 16, v80")
        a(f"v_and_b32 v80, 0xffff0000, v80")
        a(f"v_lshlrev_b32 v82, 16, v{20+k}")
        a(f"v_and_b32 v83, 0xffff0000, v{20+k}")
        a(f"v_add_f32 v81, v81, v82")
        a(f"v_add_f32 v80, v80, v83")
        a(f"v_cvt_pk_bf16_f32 v80, v81, v80")
        a(f"v_lshlrev_b32 v{64+2*k}, 16, v80")
        a(f"v_and_b32 v{65+2*k}, 0xffff0000, v80")
    c1 = -2 * 0.7978845608028654 * 1.4426950408889634
    c2 = c1 * 0.044715
    a(f"s_mov_b32 s{sT0}, {f2u(c1):#x}")
    a(f"s_mov_b32 s{sT1}, {f2u(c2):#x}")
    a(f"v_mov_b32 v100, s{sT0}")
    for i in range(16):
        a(f"v_mul_f32 v{80+i}, v{64+i}, v{64+i}")
        a(f"v_fma_f32 v{80+i}, v{80+i}, s{sT1}, v100")
        a(f"v_mul_f32 v{80+i}, v{80+i}, v{64+i}")
        a(f"v_exp_f32 v{80+i}, v{80+i}")
    for i in range(16):
        a(f"v_add_f32 v{80+i}, 1.0, v{80+i}")
        a(f"v_rcp_f32 v{80+i}, v{80+i}")
    a("s_nop 0")
    for i in range(16):
        a(f"v_mul_f32 v{64+i}, v{64+i}, v{80+i}")
    for k in range(8):
        a(f"v_cvt_pk_bf16_f32 v{80+k}, v{64+2*k}, v{65+2*k}")
    a(f"s_lshl_b32 s{sT0}, s{sA}, 6")
    a(f"v_lshl_add_u32 v17, v16, 4, s{sT0}")
    a("v_cmp_gt_u32 vcc, 1376, v17")
    a("s_nop 1")
    for k in range(8):
        a(f"v_cndmask_b32 v{80+k}, 0, v{80+k}, vcc")
    a(f"s_lshl_b32 s{sT0}, s{sB}, 6")
    a(f"v_add_u32 v14, s{sT0}, v14")
    a(f"v_mul_u32_u24 v14, {URS}, v14")
    a("v_lshl_add_u32 v14, v17, 1, v14")
    a.vm(f"buffer_store_dwordx4 v[80:83], v14, s[{S3}:{S3+3}], 0 offen sc1")
    a.vm(f"buffer_store_dwordx4 v[84:87], v14, s[{S3}:{S3+3}], 0 offen offset:16 sc1", "ust")
    a.stamp(14)
    a("s_barrier")
    R.release(Hn[6])
    R.release(Hn[7])
    rest = C if ATT else W2[3:] + C
    for i in range(EPRE):
        R.issue(rest[i])
    for i in range(3):
        consume(a, R, W2[i])
    a.vwait("ust")
    wave_flag(a, FL_U)
    a.stamp(5)
    tail(a, R, rest[:EPRE], rest[EPRE:], "G", W2[3:] if ATT else ())

    a.label("L_lpath")
    a.vmq = []
    bu_touch2(a)
    a.vm(f"buffer_load_dwordx2 v[28:29], off, s[{SDBG}:{SDBG+3}], 0 sc1")
    if LPF:
        if PFD:
            a(f"s_sleep {PFD}")
        l_pf(a)
        a("s_waitcnt vmcnt(13)")
    else:
        a("s_waitcnt vmcnt(0)")
    nonce_get(a, 28)
    a.stamp(1)
    C, W2 = weight_items(a, True, "L")
    R = Ring(a)
    tail(a, R, [], C + W2, "L")

    a.label("L_apath")
    a.vmq = []
    srd(a, S0, 'x')
    srd(a, S1, 'bre')
    srd(a, S2, 'bim')
    a(f"s_lshr_b32 s{sA}, s{sXCD}, 1")
    a(f"s_lshl_b32 s{sA}, s{sA}, 2")
    a(f"s_and_b32 s{sT0}, s{sR}, 3")
    a(f"s_add_u32 s{sA}, s{sA}, s{sT0}")
    a(f"s_and_b32 s{sB}, s{sXCD}, 1")
    a(f"s_lshl_b32 s{sB}, s{sB}, 1")
    a(f"s_lshr_b32 s{sT0}, s{sR}, 2")
    a(f"s_and_b32 s{sT0}, s{sT0}, 1")
    a(f"s_add_u32 s{sB}, s{sB}, s{sT0}")
    a(f"s_lshl_b32 s{sFLG}, s{sA}, 2")
    a(f"s_add_u32 s{sFLG}, s{sFLG}, s{sB}")
    a(f"s_lshl_b32 s{sFLG}, s{sFLG}, 2")
    a(f"s_add_u32 s{sFLG}, s{sFLG}, s3")
    a(f"s_lshl_b32 s{sT0}, s3, 15")
    a(f"s_lshl_b32 s{sC0}, s{sA}, 17")
    a(f"s_add_u32 s{sC0}, s{sC0}, s{sT0}")
    a(f"s_lshl_b32 s{sC1}, s{sB}, 17")
    a(f"s_add_u32 s{sC1}, s{sC1}, s{sT0}")
    a(f"s_lshl_b32 s{sC2}, s3, 12")
    a(f"s_mul_i32 s{sC3}, s3, 24576")
    a(f"s_add_u32 s{sC3}, s{sC3}, 49152")
    opA = Op('KC', [S0] * 8, 1024, sC0, 2, 6, perm=True)
    opB = Op('KC', [S1] * 4 + [S2] * 4, 1024, sC1, 2, 10)
    opB.rowoff = [(i & 3) * 8 * 1024 for i in range(8)]
    setup_dma(a, opA)

    def bu_dma(st):
        s = st % 3
        return (dma_groups(opA, st, s * 16384, sC2, f"b{st}", rng=range(4)) +
                dma_groups(opB, st, s * 8192, sC3, f"b{st}"))
    emit_groups(a, bu_dma(0))
    srd(a, S3, 'lre')
    srd(a, S4, 'lim')
    srd(a, S5, 'ldt')
    a("v_and_b32 v30, 31, v1")
    a(f"s_lshl_b32 s{sT0}, s{sB}, 7")
    a(f"s_lshl_b32 s{sT1}, s3, 5")
    a(f"s_add_u32 s{sT0}, s{sT0}, s{sT1}")
    a(f"v_add_u32 v30, s{sT0}, v30")
    a("v_lshlrev_b32 v29, 1, v30")
    a.vm(f"buffer_load_ushort v26, v29, s[{S3}:{S3+3}], 0 offen", "lam")
    a.vm(f"buffer_load_ushort v27, v29, s[{S4}:{S4+3}], 0 offen", "lam")
    a.vm(f"buffer_load_ushort v28, v29, s[{S5}:{S5+3}], 0 offen", "lam")
    setup_frag(a, opA, None)
    setup_frag(a, opB, sC3)
    emit_groups(a, bu_dma(1))
    FRG = [192, 216, 240, 40]

    def freg(j, part):
        if j == 2:
            return [240, 248, 32][part]
        return FRG[j] + part * 8

    def bu_rl(g):
        st, j = divmod(g, 4)
        s = st % 3
        return (read_lines(opA, s * 16384, j, freg(j, 0)) + read_lines(opA, s * 16384 + 8192, j, freg(j, 1)) +
                read_lines(opB, s * 8192, j, freg(j, 2)))

    def bu_M(st, j):
        r = []
        for tl in range(2):
            for qm in range(2):
                for qn in range(2):
                    acc = 64 + tl * 64 + (qm * 2 + qn) * 16
                    A = freg(j, tl) + qm * 4
                    B = freg(j, 2) + qn * 4
                    c = "0" if (st == 0 and j == 0) else f"v[{acc}:{acc+15}]"
                    r.append(f"v_mfma_f32_32x32x16_bf16 v[{acc}:{acc+15}], v[{A}:{A+3}], v[{B}:{B+3}], {c}")
        return r
    a.vwait("lam")
    lam_compute(a, 26, 20, 32)
    a("v_mov_b32 v24, v20")
    a("v_mov_b32 v25, v21")
    for _ in range(5):
        csq(a, 24, 25, 14, 15)
    a.vwait("b0")
    a("s_barrier")
    for l in bu_rl(0) + bu_rl(1):
        a(l)
    pend = bu_dma(2)
    for g in range(32):
        st, j = divmod(g, 4)
        rd = []
        if j == 2 and st + 1 < 8:
            emit_groups(a, pend)
            pend = []
            a.vwait(f"b{st+1}")
            a.stamp(16 + st)
            a("s_waitcnt lgkmcnt(0)")
            a("s_barrier")
            if st + 3 < 8:
                pend = bu_dma(st + 3)
            if st == 5:
                a.vm(f"buffer_load_dwordx2 v[18:19], off, s[{SDBG}:{SDBG+3}], 0 sc1", "non")
        else:
            a(f"s_waitcnt lgkmcnt({6 if g + 1 < 32 else 0})")
        if g + 2 < 32:
            rd = bu_rl(g + 2)
        for k, l in enumerate(bu_M(st, j)):
            a(l)
            if k < len(rd):
                a(rd[k])
            if k in (1, 4, 7) and pend:
                emit_groups(a, [pend.pop(0)])
    a.stamp(1)
    a.vwait0()
    nonce_get(a, 18)
    srdws(a, S3, 'e')
    a("v_lshlrev_b32 v29, 4, v30")
    a(f"s_lshl_b32 s{sT0}, s{sA}, 13")
    a("v_mov_b32 v56, v20")
    a("v_mov_b32 v57, v21")
    csq(a, 56, 57, 14, 15)
    a("v_mov_b32 v58, v20")
    a("v_mov_b32 v59, v56")
    a("v_mov_b32 v60, v21")
    a("v_mov_b32 v61, v57")
    a("s_nop 7")

    def xp(tl, k):
        xr = 64 + tl * 64 + (k >> 3) * 32 + (k & 7) * 2
        return f"v[{xr}:{xr+1}]", f"v[{xr+16}:{xr+17}]"
    LO, HI = "op_sel:[0,0,0] op_sel_hi:[1,0,1]", "op_sel:[0,1,0] op_sel_hi:[1,1,1]"
    NEG = "neg_lo:[0,1,0] neg_hi:[0,1,0]"
    for k in range(16):
        for ph in range(2):
            for tl in range(2):
                XR, XI = xp(tl, k)
                Pr, Pi = f"v[{40+4*tl}:{41+4*tl}]", f"v[{42+4*tl}:{43+4*tl}]"
                t1, t2 = f"v[{48+4*tl}:{49+4*tl}]", f"v[{50+4*tl}:{51+4*tl}]"
                if k == 0:
                    continue
                if k == 1:
                    Pr, Pi = xp(tl, 0)
                if ph == 0:
                    a(f"v_pk_fma_f32 {t1}, {Pi}, v[56:57], {XR} {HI} {NEG}")
                    a(f"v_pk_fma_f32 {t2}, {Pr}, v[56:57], {XI} {HI}")
                else:
                    a(f"v_pk_fma_f32 v[{40+4*tl}:{41+4*tl}], {Pr}, v[56:57], {t1} {LO}")
                    a(f"v_pk_fma_f32 v[{42+4*tl}:{43+4*tl}], {Pi}, v[56:57], {t2} {LO}")
    for tl in range(2):
        b = 40 + 4 * tl
        cmul_add(a, 32 + 4 * tl, 33 + 4 * tl, 20, 21, b, b + 2, b + 1, b + 3, 14 + 2 * tl, 15 + 2 * tl)
    for tl in range(2):
        for c in range(2):
            a(f"v_mov_b32 v{34+4*tl+c}, v{32+4*tl+c}")
    a("s_nop 1")
    for tl in range(2):
        for c in range(2):
            a(f"v_permlane32_swap_b32 v{32+4*tl+c}, v{34+4*tl+c}")
    a("s_nop 1")
    cmul_add(a, 40, 41, 24, 25, 32, 33, 34, 35, 14, 15)
    cmul_add(a, 40, 41, 24, 25, 40, 41, 36, 37, 14, 15)
    cmul_add(a, 40, 41, 24, 25, 40, 41, 38, 39, 14, 15)
    a(f"v_mov_b32 v42, s{sN}")
    a(f"v_mov_b32 v43, s{sN+1}")
    a("s_mov_b32 exec_hi, 0")
    a.vm(f"buffer_store_dwordx4 v[40:43], v29, s[{S3}:{S3+3}], s{sT0} offen sc1")
    a("s_mov_b64 exec, -1")
    a.stamp(2)
    a("s_barrier")
    C, W2 = weight_items(a, True, "A")
    R = Ring(a)

    def premul(t_):
        L2, H2 = "op_sel:[0,0] op_sel_hi:[1,0]", "op_sel:[0,1] op_sel_hi:[1,1]"
        for k in range(16):
            for tl in range(2):
                XR, XI = xp(tl, k)
                t1, t2 = f"v[{48+4*tl}:{49+4*tl}]", f"v[{50+4*tl}:{51+4*tl}]"
                t_(f"v_pk_mul_f32 {t1}, {XI}, v[22:23] {H2}")
                t_(f"v_pk_mul_f32 {t2}, {XR}, v[22:23] {H2}")
                t_(f"v_pk_fma_f32 {XR}, {XR}, v[22:23], {t1} {LO} neg_lo:[0,0,1] neg_hi:[0,0,1]")
                t_(f"v_pk_fma_f32 {XI}, {XI}, v[22:23], {t2} {LO}")
            for tl in range(2):
                xr = 64 + tl * 64 + (k >> 3) * 32 + (k & 7) * 2
                cmul_add(t_, xr + 1, xr + 17, 20, 21, xr, xr + 16, xr + 1, xr + 17, 14 + 2 * tl, 15 + 2 * tl)
    g0 = []
    for i in range(AW):
        g0 += R.groups(W2[i])
    sprinkled(a, premul, g0, 6)
    a("v_mov_b32 v44, v24")
    a("v_mov_b32 v45, v25")
    csq(a, 44, 45, 14, 15)
    csq(a, 44, 45, 14, 15)
    for i in range(AW):
        consume(a, R, W2[i])
    a.stamp(3)
    a("v_mov_b32 v42, 0")
    a("v_mov_b32 v43, 0")
    a(f"s_cmp_eq_u32 s{sA}, 0")
    a("s_cbranch_scc1 L_a_nocarry")
    a(f"s_mov_b32 s{sCNT}, 20000")
    a(f"s_lshl_b32 s{sT1}, s{sA}, 13")
    a(f"s_sub_u32 s{sT1}, s{sT1}, 8192")
    a.label("L_aep")
    for j in range(15):
        a(f"s_min_u32 s{sT0}, s{sT1}, {j*8192}")
        a(f"buffer_load_dwordx4 v[{192+4*j}:{195+4*j}], v29, s[{S3}:{S3+3}], s{sT0} offen sc1")
    a("s_waitcnt vmcnt(0)")
    a(f"v_cmp_ne_u64 vcc, s[{sN}:{sN+1}], v[194:195]")
    for j in range(1, 15):
        a(f"v_cmp_ne_u64 s[48:49], s[{sN}:{sN+1}], v[{194+4*j}:{195+4*j}]")
        a(f"s_or_b64 vcc, vcc, s[48:49]")
    a(f"s_cbranch_vccz L_aepd")
    a(f"s_sub_u32 s{sCNT}, s{sCNT}, 1")
    a(f"s_cmp_lg_u32 s{sCNT}, 0")
    a(f"s_cbranch_scc1 L_aep")
    a.label("L_aepd")
    for j in range(15):
        a(f"s_cmp_le_u32 s{sA}, {j}")
        a("s_cbranch_scc1 L_a_nocarry")
        cmul_add(a, 42, 43, 44, 45, 42, 43, 192 + 4 * j, 193 + 4 * j, 14, 15)
    a.label("L_a_nocarry")
    a.stamp(4)
    cmul_add(a, 46, 47, 24, 25, 42, 43, 32, 33, 14, 15)
    cmul_add(a, 48, 49, 24, 25, 46, 47, 34, 35, 14, 15)
    cmul_add(a, 50, 51, 24, 25, 48, 49, 36, 37, 14, 15)
    a("v_cmp_lt_u32 vcc, 31, v1")
    a("s_nop 1")
    a("v_cndmask_b32 v52, v42, v46, vcc")
    a("v_cndmask_b32 v53, v43, v47, vcc")
    a("v_cndmask_b32 v54, v48, v50, vcc")
    a("v_cndmask_b32 v55, v49, v51, vcc")
    for tl in range(2):
        c = 52 + 2 * tl
        e = 32 + 4 * tl
        a(f"v_mul_f32 v14, v23, v{c+1}")
        a(f"v_mul_f32 v15, v23, v{c}")
        a(f"v_fma_f32 v{e+1}, v22, v{c}, -v14")
        a(f"v_fma_f32 v{e+3}, v22, v{c+1}, v15")
    srdws(a, S4, 'h')
    a("v_lshrrev_b32 v14, 5, v1")
    a("v_lshlrev_b32 v29, 2, v30")
    a("v_lshl_add_u32 v29, v14, 16, v29")
    a(f"s_lshl_b32 s{sT0}, s{sA}, 18")

    def scan(t_):
        for k in range(16):
            for ph in range(2):
                for tl in range(2):
                    XR, XI = xp(tl, k)
                    if k == 0:
                        Pr, Pi = f"v[{32+4*tl}:{33+4*tl}]", f"v[{34+4*tl}:{35+4*tl}]"
                    else:
                        Pr, Pi = xp(tl, k - 1)
                    if ph == 0:
                        t_(f"v_pk_fma_f32 {XR}, v[60:61], {Pi}, {XR} {HI} {NEG}")
                        t_(f"v_pk_fma_f32 {XI}, v[60:61], {Pr}, {XI} {HI}")
                    else:
                        t_(f"v_pk_fma_f32 {XR}, v[58:59], {Pr}, {XR} {HI}")
                        t_(f"v_pk_fma_f32 {XI}, v[58:59], {Pi}, {XI} {HI}")
            kk = k - 1 if k < 15 else None
            for kq in ([k - 1] if 0 < k < 15 else ([14, 15] if k == 15 else [])):
                for tl in range(2):
                    xr = 64 + tl * 64 + (kq >> 3) * 32 + (kq & 7) * 2
                    t_(f"s_add_u32 s{sT1+tl}, s{sT0}, {(tl * 64 + 2 * kq) * 2048}")
                    for h in range(2):
                        pk = 40 + ((kq * 4 + tl * 2 + h) & 7)
                        t_(f"v_cvt_pk_bf16_f32 v{pk}, v{xr+h}, -v{xr+16+h}")
                        t_.vm(f"buffer_store_dword v{pk}, v29, s[{S4}:{S4+3}], s{sT1+tl} offen offset:{h * 2048} sc1", "hst")
    rest = W2[AW:] + C
    g0 = []
    nis = min(len(R.free), ASC)
    for it in rest[:nis]:
        g0 += R.groups(it)
    sprinkled(a, scan, g0, 5)
    a.stamp(13)
    a.vwait("hst")
    wave_flag(a, FL_H)
    a.stamp(5)
    tail(a, R, rest[:nis], rest[nis:], "A")
    a.label("L_end")
    a("s_endpgm")


def main():
    ref = open(f"cdna_kernels/{NAME}.s.ref").read().split("\n")
    head = [l for l in ref if l.startswith(";") and "@launch" not in l and "Override" not in l and "grid=ceil" not in l]
    out = head + [
        "; @launch grid=(256,1,1) block=(256,1,1) lds=163840",
        '.amdgcn_target "amdgcn-amd-amdhsa--gfx950"',
        ".text",
    ]
    a = Asm()
    kernel(a)
    out += a.lines
    out.append('.section .rodata,"a"')
    out.append(f""".p2align 6
.amdhsa_kernel {NAME}_kernel
  .amdhsa_next_free_vgpr 512
  .amdhsa_next_free_sgpr 102
  .amdhsa_accum_offset 256
  .amdhsa_group_segment_fixed_size 0
  .amdhsa_kernarg_size 144
  .amdhsa_user_sgpr_count 2
  .amdhsa_user_sgpr_kernarg_segment_ptr 1
  .amdhsa_system_sgpr_workgroup_id_x 1
.end_amdhsa_kernel
""")
    path = sys.argv[1] if len(sys.argv) > 1 else f"f5.s"
    open(path, "w").write("\n".join(out) + "\n")


main()
```

```python
import os
import struct
import sys

NAME = "gated_mix__ssm_conv_s5__mixer_token_mlp__prompt"
STAMPS = int(os.environ.get("STAMPS", "0"))
SLEEP = int(os.environ.get("SLEEP", "4"))
DRY = int(os.environ.get("DRY", "0"))
SSM_FIRST = os.environ.get("MIXFIRST") != "1"

KP = dict(x=64, lre=66, lim=68, bre=70, bim=72, cre=74, cim=76, ldt=78, dsk=80,
          w1=84, b1=86, w2=88, b2=90, gw=92, out=94, dbg=96, ws=98)
SZ = dict(x=2048 * 512 * 2, lre=1024, lim=1024, bre=512 * 512 * 2, bim=512 * 512 * 2,
          cre=512 * 512 * 2, cim=512 * 512 * 2, ldt=1024, dsk=1024, w1=2048 * 1376 * 2,
          b1=1376 * 2, w2=1376 * 2048 * 2, b2=4096, gw=1024, out=2048 * 512 * 4, dbg=256)
WS = dict(
    hln=(int(os.environ.get('HB', '0'), 0), 2048 * 512 * 2),
    g=(0x0200000, 768 * 128),
    e=(0x0300000, 16 * 512 * 16),
    fl=(0x0380000, 0x10000),
    u=(0x0400000, 512 * 1408 * 2),
    h=(0x0800000, 2048 * 1024 * 2),
)
if int(os.environ.get('WC', '0')):
    WS.update(u=(0x200000, 512 * 1408 * 2), g=(0x360000, 768 * 128), e=(0x380000, 16 * 512 * 16), fl=(0x3A0000, 0x10000),
              h=(0x400000, 2048 * 1024 * 2))
WSTOP = max(o + n for o, n in WS.values())
URS = 1408 * 2
WREG = 40960
SLOT = 8192
NSLOT = 5
PUP = 24576
LNR = 4

S0, S1, S2, S3, S4, S5, S6, S7 = 8, 12, 16, 20, 24, 28, 32, 36
SDBG = 4
sXCD, sR, sWB = 40, 41, 42
sT0, sT1, sT2, sT3, sT4 = 43, 44, 45, 46, 47
sST, sDT, sFLG, sA, sB, sC0, sC1, sT, sCNT = 52, 53, 54, 55, 56, 57, 58, 59, 60
sC2, sC3 = 61, 62
sP0, sP1 = 50, 51
sFB = 63
TOUCH = os.environ.get('TOUCH', 'hus')
W1PRE = int(os.environ.get('W1PRE', '2'))
sN = 100
HT = int(os.environ.get('HT', '0'))
TT = int(os.environ.get('TT', '0'))
SK = int(os.environ.get('SK', '0'))
OVF = 0x1000000
FSTR = 32
FS = int(os.environ.get('FS', '5'))
GF = int(os.environ.get('GF', '0'))
FL_LN, FL_U, FL_H = 0, 0x100 << FS, 0x400 << FS
WS['fl'] = (WS['fl'][0], 0x800 << FS)
if GF:
    WS['g'] = (WS['g'][0], 512 * 256)

f2u = lambda f: struct.unpack("<I", struct.pack("<f", f))[0]


class Asm:
    def __init__(self):
        self.lines = []
        self.uid = 0
        self.vmq = []

    def __call__(self, s):
        self.lines.append("    " + s)

    def label(self, l):
        self.lines.append(l + ":")

    def newlabel(self, p):
        self.uid += 1
        return f"L_{p}_{self.uid}"

    def raw(self, s):
        self.lines.append(s)

    def vm(self, s, tag=None):
        self(s)
        self.vmq.append(tag)

    def vwait(self, tag):
        if tag not in self.vmq:
            return
        idx = max(i for i, t in enumerate(self.vmq) if t == tag)
        n = len(self.vmq) - 1 - idx
        n = min(n, 63)
        self(f"s_waitcnt vmcnt({n})")
        self.vmq = self.vmq[len(self.vmq) - n:] if n else []

    def vwait0(self):
        self("s_waitcnt vmcnt(0)")
        self.vmq = []

    def stamp(self, idx):
        if STAMPS and (idx < 16 or STAMPS > 1):
            self("s_memrealtime s[0:1]")
            self("s_waitcnt lgkmcnt(0)")
            self(f"v_writelane_b32 v31, s0, {idx}")

    def cstamp(self, idx):
        if STAMPS:
            self("s_memtime s[0:1]")
            self("s_waitcnt lgkmcnt(0)")
            self(f"v_writelane_b32 v31, s0, {idx}")

    def stamp_flush(self):
        if not STAMPS:
            return
        self.cstamp(63)
        self(f"s_add_u32 s{S0}, s{KP['ws']}, 0x2000000")
        self(f"s_addc_u32 s{S0+1}, s{KP['ws']+1}, 0")
        self(f"s_and_b32 s{S0+1}, s{S0+1}, 0xffff")
        self(f"s_mov_b32 s{S0+2}, 0x100000")
        self(f"s_mov_b32 s{S0+3}, 0x00020000")
        self(f"s_lshl_b32 s{sT0}, s2, 2")
        self(f"s_add_u32 s{sT0}, s{sT0}, s3")
        self(f"s_lshl_b32 s{sT0}, s{sT0}, 8")
        self("v_lshlrev_b32 v2, 2, v1")
        self(f"buffer_store_dword v31, v2, s[{S0}:{S0+3}], s{sT0} offen")


def srd(a, slot, key):
    p = KP[key]
    a(f"s_mov_b32 s{slot}, s{p}")
    a(f"s_and_b32 s{slot+1}, s{p+1}, 0xffff")
    a(f"s_mov_b32 s{slot+2}, {SZ[key]}")
    a(f"s_mov_b32 s{slot+3}, 0x00020000")


def srdws(a, slot, key):
    off, size = WS[key]
    if SK and key in ('hln', 'h', 'u'):
        size += OVF
    p = KP['ws']
    a(f"s_add_u32 s{slot}, s{p}, {off}")
    a(f"s_addc_u32 s{slot+1}, s{p+1}, 0")
    a(f"s_and_b32 s{slot+1}, s{slot+1}, 0xffff")
    a(f"s_mov_b32 s{slot+2}, {size}")
    a(f"s_mov_b32 s{slot+3}, 0x00020000")


class Op:
    def __init__(self, kind, srds, rs, scur, vdma, vfrag, perm=False, hmap=False):
        self.kind = kind
        self.srds = srds
        self.rs = rs
        self.scur = scur
        self.vdma = vdma
        self.vfrag = vfrag
        self.perm = perm
        self.hmap = hmap
        self.rowoff = [i * 8 * rs for i in range(8)]
        self.adv = 128 if kind == 'KC' else 64 * rs


def sk_off(a, sdst, sa, sw):
    a(f"s_lshl_b32 s{sdst}, s{sa}, 2")
    a(f"s_add_u32 s{sdst}, s{sdst}, s{sw}")
    a(f"s_mul_i32 s{sT4}, s{sdst}, 147")
    a(f"s_lshr_b32 s{sT4}, s{sT4}, 10")
    a(f"s_mul_i32 s{sT4}, s{sT4}, 7")
    a(f"s_sub_u32 s{sdst}, s{sdst}, s{sT4}")
    a(f"s_cmp_ge_u32 s{sdst}, 3")
    a(f"s_addc_u32 s{sdst}, s{sdst}, 0")
    a(f"s_lshl_b32 s{sdst}, s{sdst}, 7")
    a(f"s_add_u32 s{sdst}, s{sdst}, {OVF - 384}")


def setup_dma(a, op):
    rs = op.rs
    a(f"v_lshrrev_b32 v14, 3, v1")
    if getattr(op, 'sk', None) is not None:
        sk_off(a, sT3, op.sk, 3)
        a(f"v_cmp_eq_u32 vcc, 3, v14")
        a(f"v_mov_b32 v16, s{sT3}")
        a(f"v_cndmask_b32 v16, 0, v16, vcc")
        a(f"v_lshl_add_u32 v14, v14, 7, v16")
        assert rs == 128
    else:
        a(f"v_mul_u32_u24 v14, {rs}, v14")
    a(f"v_and_b32 v15, 7, v1")
    if op.kind == 'KC':
        a(f"v_lshrrev_b32 v16, 4, v1")
        a(f"v_xor_b32 v15, v15, v16")
        if getattr(op, 'q32', False):
            a(f"v_and_b32 v16, {(1 << op.q32) - 1}, v15")
            a(f"v_lshrrev_b32 v15, {op.q32}, v15")
            a(f"v_lshlrev_b32 v15, {10 + op.q32}, v15")
            a(f"v_lshl_add_u32 v15, v16, 4, v15")
        else:
            a(f"v_lshlrev_b32 v15, 4, v15")
        a(f"v_add_u32 v{op.vdma}, v14, v15")
        a(f"v_xor_b32 v15, {4096 if getattr(op, 'q32', False) else 64}, v15")
        a(f"v_add_u32 v{op.vdma+1}, v14, v15")
    else:
        a(f"v_lshrrev_b32 v16, 2, v1")
        a(f"v_and_b32 v16, 4, v16")
        a(f"v_xor_b32 v15, v15, v16")
        a(f"v_lshl_add_u32 v{op.vdma}, v15, 4, v14")


def setup_frag(a, op, sbase):
    if op.kind == 'KC':
        a(f"v_and_b32 v14, 31, v1")
        if op.perm:
            a(f"v_lshrrev_b32 v15, 2, v14")
            a(f"v_and_b32 v15, 1, v15")
            a(f"v_lshlrev_b32 v15, 5, v15")
            a(f"v_lshrrev_b32 v16, 3, v14")
            a(f"v_lshl_add_u32 v15, v16, 2, v15")
            a(f"v_and_b32 v14, 3, v14")
            a(f"v_add_u32 v14, v14, v15")
        a(f"v_lshrrev_b32 v15, 1, v14")
        a(f"v_and_b32 v15, 7, v15")
        a(f"v_lshrrev_b32 v16, 5, v1")
        if op.hmap:
            a(f"v_lshlrev_b32 v16, 1, v16")
        a(f"v_xor_b32 v15, v15, v16")
        a(f"v_lshlrev_b32 v15, 4, v15")
        a(f"v_lshl_add_u32 v14, v14, 7, v15")
        if sbase is None:
            a(f"v_mov_b32 v{op.vfrag}, v14")
        else:
            a(f"v_add_u32 v{op.vfrag}, s{sbase}, v14")
        for j in range(1, 4):
            c = (((j >> 1) << 2) | (j & 1)) << 4 if op.hmap else j << 5
            a(f"v_xor_b32 v{op.vfrag+j}, {c}, v{op.vfrag}")
    else:
        a(f"v_lshrrev_b32 v14, 5, v1")
        a(f"v_lshlrev_b32 v14, 3, v14")
        a(f"v_lshrrev_b32 v15, 2, v1")
        a(f"v_and_b32 v15, 3, v15")
        a(f"v_add_u32 v14, v14, v15")
        a(f"v_lshlrev_b32 v14, 7, v14")
        a(f"v_lshrrev_b32 v16, 4, v1")
        a(f"v_and_b32 v16, 1, v16")
        a(f"v_lshlrev_b32 v16, 1, v16")
        a(f"v_lshrrev_b32 v17, 1, v1")
        a(f"v_and_b32 v17, 1, v17")
        a(f"v_add_u32 v16, v16, v17")
        a(f"v_lshrrev_b32 v15, 1, v15")
        a(f"v_lshlrev_b32 v15, 2, v15")
        a(f"v_xor_b32 v16, v16, v15")
        a(f"v_lshl_add_u32 v14, v16, 4, v14")
        a(f"v_and_b32 v17, 1, v1")
        a(f"v_lshl_add_u32 v14, v17, 3, v14")
        a(f"v_add_u32 v{op.vfrag}, s{sbase}, v14")
        a(f"v_xor_b32 v{op.vfrag+1}, 64, v{op.vfrag}")


def dma_groups(op, st, ldsoff, sbase, tag, rng=range(8), m=0):
    out = []
    for i in rng:
        v = op.vdma + ((i & 1) if op.kind == 'KC' else 0)
        out.append(([f"s_add_u32 m0, s{sbase}, {ldsoff + i * 1024}",
                     f"s_add_u32 s{sT}, s{op.scur}, {op.rowoff[i] + st * op.adv}"],
                    f"buffer_load_dwordx4 v{v}, s[{op.srds[i]}:{op.srds[i]+3}], s{sT} offen lds", tag))
    return out


def emit_groups(a, grps):
    for pre, ld, tag in grps:
        for l in pre:
            a(l)
        a.vm(ld, tag)


def read_lines(op, ldsoff, j, dst, rf='v'):
    out = []
    for q in range(2):
        d = dst + q * 4
        if op.kind == 'KC':
            off = ldsoff + q * (2048 if op.perm else 4096)
            out.append(f"ds_read_b128 {rf}[{d}:{d+3}], v{op.vfrag+j} offset:{off}")
        else:
            off = ldsoff + j * 2048
            out.append(f"ds_read_b64_tr_b16 {rf}[{d}:{d+1}], v{op.vfrag+q} offset:{off}")
            out.append(f"ds_read_b64_tr_b16 {rf}[{d+2}:{d+3}], v{op.vfrag+q} offset:{off+512}")
    return out


def reads(a, op, ldsoff, j, dst, rf='v'):
    for l in read_lines(op, ldsoff, j, dst, rf):
        a(l)


def bf16r(a, dst, src):
    a(f"v_cvt_pk_bf16_f32 v{dst}, v{src}, v{src}")
    a(f"v_lshlrev_b32 v{dst}, 16, v{dst}")


def nonce_issue(a, nv):
    l = a.newlabel("ni")
    a("s_cmp_lg_u32 s3, 0")
    a(f"s_cbranch_scc1 {l}")
    a(f"buffer_load_dwordx2 v[{nv}:{nv+1}], off, s[{SDBG}:{SDBG+3}], 0 sc1")
    a.label(l)


def set_flag(a, base, tag=None, first=None):
    if tag is None:
        a.vwait0()
    elif tag != "done":
        a.vwait(tag)
    a("s_barrier")
    l = a.newlabel("nf")
    a("s_cmp_lg_u32 s3, 0")
    a(f"s_cbranch_scc1 {l}")
    if first:
        lp = a.newlabel("np")
        ld = a.newlabel("npd")
        a(f"s_mov_b32 s{sCNT}, 20000")
        a.label(lp)
        a(f"v_readfirstlane_b32 s{sN}, v{first}")
        a(f"v_readfirstlane_b32 s{sN+1}, v{first+1}")
        a(f"s_cmp_lg_u32 s{sN}, 0")
        a(f"s_cbranch_scc1 {ld}")
        a(f"buffer_load_dwordx2 v[{first}:{first+1}], off, s[{SDBG}:{SDBG+3}], 0 sc1")
        a("s_waitcnt vmcnt(0)")
        a(f"s_sub_u32 s{sCNT}, s{sCNT}, 1")
        a(f"s_cmp_lg_u32 s{sCNT}, 0")
        a(f"s_cbranch_scc1 {lp}")
        a.label(ld)
        srdws(a, SDBG, 'fl')
    a("s_mov_b64 exec, 1")
    a(f"s_lshl_b32 s{sCNT}, s{sFLG}, 5")
    a(f"v_mov_b32 v14, s{sN}")
    a(f"v_mov_b32 v15, s{sN+1}")
    a(f"buffer_store_dwordx2 v[14:15], off, s[{SDBG}:{SDBG+3}], s{sCNT} offset:{base & 0xfff} sc1" if base < 0x1000 else
      f"s_add_u32 s{sCNT}, s{sCNT}, {base}\n    buffer_store_dwordx2 v[14:15], off, s[{SDBG}:{SDBG+3}], s{sCNT} sc1")
    a("s_mov_b64 exec, -1")
    a.label(l)


def touch(a, op, stages, two=False):
    a(f"v_mul_u32_u24 v18, {op.rs}, v1")
    for st in stages:
        a(f"s_add_u32 s{sT}, s{op.scur}, {st * op.adv}")
        a.vm(f"buffer_load_dword v5, v18, s[{op.srds[0]}:{op.srds[0]+3}], s{sT} offen")
        if two:
            a.vm(f"buffer_load_dword v5, v18, s[{op.srds[0]}:{op.srds[0]+3}], s{sT} offen offset:124")


def wait_flags(a, n=1, dv=18):
    l = a.newlabel("poll")
    d = a.newlabel("polld")
    a("s_cmp_lg_u32 s3, 0")
    a(f"s_cbranch_scc1 {d}")
    a(f"s_mov_b32 s{sCNT}, 20000")
    a.label(l)
    for i in range(n):
        a(f"buffer_load_dwordx2 v[{dv+2*i}:{dv+1+2*i}], v{14+i}, s[{SDBG}:{SDBG+3}], 0 offen sc1")
    a("s_waitcnt vmcnt(0)")
    a(f"v_cmp_ne_u64 vcc, s[{sN}:{sN+1}], v[{dv}:{dv+1}]")
    for i in range(1, n):
        a(f"v_cmp_ne_u64 s[48:49], s[{sN}:{sN+1}], v[{dv+2*i}:{dv+1+2*i}]")
        a(f"s_or_b64 vcc, vcc, s[48:49]")
    a(f"s_cbranch_vccz {d}")
    if SLEEP:
        a(f"s_sleep {SLEEP}")
    a(f"s_sub_u32 s{sCNT}, s{sCNT}, 1")
    a(f"s_cmp_lg_u32 s{sCNT}, 0")
    a(f"s_cbranch_scc1 {l}")
    a.label(d)
    a("s_mov_b64 exec, -1")
    a("s_barrier")


def c_share_touch(a):
    a(f"s_and_b32 s{sT0}, s{sR}, 7")
    a(f"s_lshl_b32 s{sT0}, s{sT0}, 1")
    a(f"s_and_b32 s{sT1}, s3, 1")
    a(f"s_add_u32 s{sT0}, s{sT0}, s{sT1}")
    a(f"s_lshl_b32 s{sT0}, s{sT0}, 12")
    a(f"s_lshl_b32 s{sT1}, s{sDT}, 16")
    a(f"s_add_u32 s{sT0}, s{sT0}, s{sT1}")
    a("v_and_b32 v18, 31, v1")
    a("v_lshlrev_b32 v18, 7, v18")
    a.vm(f"buffer_load_dword v5, v18, s[{S5}:{S5+3}], s{sT0} offen")


def w2_share_touch(a):
    a(f"s_lshr_b32 s{sT0}, s{sR}, 3")
    a(f"s_mul_i32 s{sT0}, s{sT0}, 460")
    a(f"s_mul_i32 s{sT1}, s3, 115")
    a(f"s_add_u32 s{sT0}, s{sT0}, s{sT1}")
    a(f"s_lshl_b32 s{sT0}, s{sT0}, 12")
    a(f"s_lshl_b32 s{sT1}, s{sST}, 7")
    a(f"s_add_u32 s{sT0}, s{sT0}, s{sT1}")
    a(f"s_add_u32 s{sT1}, s{sT0}, {64*4096}")
    a("v_lshlrev_b32 v18, 12, v1")
    a.vm(f"buffer_load_dword v5, v18, s[{S6}:{S6+3}], s{sT0} offen")
    a.vm(f"buffer_load_dword v5, v18, s[{S6}:{S6+3}], s{sT1} offen")


def bu_share_touch(a):
    a(f"s_cmp_ge_u32 s{sR}, 24")
    a(f"s_cselect_b32 s{S7}, s{KP['bim']}, s{KP['bre']}")
    a(f"s_cselect_b32 s{S7+1}, s{KP['bim']+1}, s{KP['bre']+1}")
    a(f"s_and_b32 s48, s{sXCD}, 1")
    a(f"s_lshl_b32 s48, s48, 18")
    a(f"s_and_b32 s49, s{sR}, 7")
    a(f"s_mov_b32 s{S7+2}, {SZ['bre']}")
    a(f"s_lshr_b32 s50, s{sXCD}, 1")
    a(f"s_lshl_b32 s50, s50, 19")
    a(f"s_cmp_lt_u32 s{sR}, 16")
    a(f"s_cselect_b32 s{S7}, s{KP['x']}, s{S7}")
    a(f"s_cselect_b32 s{S7+1}, s{KP['x']+1}, s{S7+1}")
    a(f"s_cselect_b32 s{S7+2}, {SZ['x']}, s{S7+2}")
    a(f"s_cselect_b32 s48, s50, s48")
    a(f"s_cselect_b32 s49, s{sR}, s49")
    a(f"s_and_b32 s{S7+1}, s{S7+1}, 0xffff")
    a(f"s_mov_b32 s{S7+3}, 0x00020000")
    a(f"s_lshl_b32 s49, s49, 2")
    a(f"s_add_u32 s49, s49, s3")
    a(f"s_lshl_b32 s49, s49, 13")
    a(f"s_add_u32 s48, s48, s49")
    a("v_lshlrev_b32 v18, 7, v1")
    a.vm(f"buffer_load_dword v5, v18, s[{S7}:{S7+3}], s48 offen")


def cmul_add(a, dr, di, ar, ai, br, bi, cr, ci, t0, t1):
    a(f"v_fma_f32 v{t0}, -v{ai}, v{bi}, v{cr}")
    a(f"v_fma_f32 v{t1}, v{ai}, v{br}, v{ci}")
    a(f"v_fma_f32 v{dr}, v{ar}, v{br}, v{t0}")
    a(f"v_fma_f32 v{di}, v{ar}, v{bi}, v{t1}")


def csq(a, r, i, t0, t1):
    a(f"v_mul_f32 v{t0}, v{i}, v{i}")
    a(f"v_mul_f32 v{t1}, v{r}, v{i}")
    a(f"v_fma_f32 v{r}, v{r}, v{r}, -v{t0}")
    a(f"v_add_f32 v{i}, v{t1}, v{t1}")


def lam_compute(a, raw, base, t):
    lr, li, cr, ci = base, base + 1, base + 2, base + 3
    Lr, Li, dt = raw, raw + 1, raw + 2
    a(f"v_lshlrev_b32 v{Lr}, 16, v{Lr}")
    a(f"v_lshlrev_b32 v{Li}, 16, v{Li}")
    a(f"v_lshlrev_b32 v{dt}, 16, v{dt}")
    a(f"v_mul_f32 v{dt}, 0x3fb8aa3b, v{dt}")
    a(f"v_exp_f32 v{dt}, v{dt}")
    a("s_nop 0")
    bf16r(a, dt, dt)
    a(f"v_mul_f32 v{t}, v{dt}, v{Lr}")
    a(f"v_mul_f32 v{t+1}, v{dt}, v{Li}")
    a(f"v_mul_f32 v{t}, 0x3fb8aa3b, v{t}")
    a(f"v_exp_f32 v{t}, v{t}")
    a(f"v_mul_f32 v{t+1}, 0.15915494, v{t+1}")
    a(f"v_fract_f32 v{t+1}, v{t+1}")
    a(f"v_cos_f32 v{t+2}, v{t+1}")
    a(f"v_sin_f32 v{t+3}, v{t+1}")
    a("s_nop 0")
    a(f"v_mul_f32 v{lr}, v{t}, v{t+2}")
    a(f"v_mul_f32 v{li}, v{t}, v{t+3}")
    a(f"v_add_f32 v{t}, -1.0, v{lr}")
    a(f"v_mul_f32 v{t+1}, v{Lr}, v{Lr}")
    a(f"v_fma_f32 v{t+1}, v{Li}, v{Li}, v{t+1}")
    a(f"v_rcp_f32 v{t+1}, v{t+1}")
    a(f"v_mul_f32 v{t+2}, v{t}, v{Lr}")
    a(f"v_fma_f32 v{t+2}, v{li}, v{Li}, v{t+2}")
    a(f"v_mul_f32 v{t+3}, v{li}, v{Lr}")
    a(f"v_fma_f32 v{t+3}, -v{t}, v{Li}, v{t+3}")
    a(f"v_mul_f32 v{cr}, v{t+2}, v{t+1}")
    a(f"v_mul_f32 v{ci}, v{t+3}, v{t+1}")


GOFF = 0x10000


def ln_compute(a):
    R = LNR
    XR, GW, GU, XU = 32, 48, 52, 60
    D, Q, SD, G, T = 92, 100, 108, 116, 120
    for r in range(R):
        a(f"v_lshlrev_b32 v{XU+8*r}, 16, v{XR+4*r}")
    for k in range(4):
        a(f"v_lshlrev_b32 v{GU+2*k}, 16, v{GW+k}")
        a(f"v_and_b32 v{GU+1+2*k}, 0xffff0000, v{GW+k}")
    KS = [48, 50, 0, 82]
    for r in range(R):
        a(f"v_readfirstlane_b32 s{KS[r]}, v{XU+8*r}")
    a(f"s_mov_b32 s{sT3}, 0x3f803f80")
    for r in range(R):
        for k in range(4):
            if k:
                a(f"v_lshlrev_b32 v{XU+8*r+2*k}, 16, v{XR+4*r+k}")
            a(f"v_and_b32 v{XU+1+8*r+2*k}, 0xffff0000, v{XR+4*r+k}")
    NEG1 = "op_sel_hi:[1,0] neg_lo:[0,1] neg_hi:[0,1]"
    for k in range(4):
        TT = SD if k == 0 else T
        for r in range(R):
            X = XU + 8 * r + 2 * k
            a(f"v_pk_add_f32 v[{TT+2*r}:{TT+2*r+1}], v[{X}:{X+1}], s[{KS[r]}:{KS[r]+1}] {NEG1}")
        for r in range(R):
            X = XU + 8 * r + 2 * k
            a(f"v_pk_mul_f32 v[{D+2*r}:{D+2*r+1}], v[{X}:{X+1}], v[{GU+2*k}:{GU+2*k+1}]")
        for r in range(R):
            t = f"v[{TT+2*r}:{TT+2*r+1}]"
            if k == 0:
                a(f"v_pk_mul_f32 v[{Q+2*r}:{Q+2*r+1}], {t}, {t}")
            else:
                a(f"v_pk_fma_f32 v[{Q+2*r}:{Q+2*r+1}], {t}, {t}, v[{Q+2*r}:{Q+2*r+1}]")
        for r in range(R):
            a(f"v_cvt_pk_bf16_f32 v{D+2*r}, v{D+2*r}, v{D+2*r+1}")
        if k:
            for r in range(R):
                a(f"v_pk_add_f32 v[{SD+2*r}:{SD+2*r+1}], v[{SD+2*r}:{SD+2*r+1}], v[{T+2*r}:{T+2*r+1}]")
        for r in range(R):
            a(f"v_dot2_f32_bf16 v{G+r}, v{D+2*r}, s{sT3}, {'0' if k == 0 else f'v{G+r}'}")
    for r in range(R):
        a(f"v_add_f32 v{Q+2*r}, v{Q+2*r}, v{Q+2*r+1}")
        a(f"v_add_f32 v{SD+2*r}, v{SD+2*r}, v{SD+2*r+1}")
    qs = [[Q + 2 * r for r in range(R)], [SD + 2 * r for r in range(R)], [G + r for r in range(R)]]
    a("s_nop 1")
    for q in qs:
        a(f"v_permlane32_swap_b32 v{q[0]}, v{q[2]}")
        a(f"v_permlane32_swap_b32 v{q[1]}, v{q[3]}")
    a("s_nop 1")
    for q in qs:
        a(f"v_add_f32 v{q[0]}, v{q[0]}, v{q[2]}")
        a(f"v_add_f32 v{q[1]}, v{q[1]}, v{q[3]}")
    a("s_nop 1")
    for q in qs:
        a(f"v_permlane16_swap_b32 v{q[0]}, v{q[1]}")
    a("s_nop 1")
    for q in qs:
        a(f"v_add_f32 v{q[0]}, v{q[0]}, v{q[1]}")
    a(f"v_mov_b32 v{D}, s{KS[0]}")
    for sh in (8, 4, 2, 1):
        a("s_nop 1")
        for q in qs:
            v = q[0]
            a(f"v_add_f32_dpp v{v}, v{v}, v{v} row_ror:{sh} row_mask:0xf bank_mask:0xf")
    for r in range(1, R):
        a(f"v_writelane_b32 v{D}, s{KS[r]}, {16*r}")
    a(f"v_mul_f32 v{SD}, 0x3b000000, v{SD}")
    a(f"v_mul_f32 v{Q}, 0x3b000000, v{Q}")
    a(f"v_add_f32 v{D}, v{D}, v{SD}")
    a(f"v_fma_f32 v{Q}, -v{SD}, v{SD}, v{Q}")
    bf16r(a, D, D)
    a(f"v_max_f32 v{Q}, 0, v{Q}")
    bf16r(a, Q, Q)
    for r in range(R):
        a(f"v_readlane_b32 s{KS[r]}, v{D}, {16*r}")
    a(f"v_add_f32 v{Q}, 0x3727c5ac, v{Q}")
    bf16r(a, Q, Q)
    a(f"v_sqrt_f32 v{Q}, v{Q}")
    bf16r(a, G, G)
    bf16r(a, Q, Q)
    a(f"v_rcp_f32 v{Q}, v{Q}")
    for r in range(R):
        for k in range(4):
            X = XU + 8 * r + 2 * k
            a(f"v_pk_add_f32 v[{X}:{X+1}], v[{X}:{X+1}], s[{KS[r]}:{KS[r]+1}] {NEG1}")
        if r == 0:
            a(f"v_mul_f32 v{G}, 0xbfb8aa3b, v{G}")
            for rr in range(R):
                a(f"v_readlane_b32 s{KS[rr]+1}, v{Q}, {16*rr}")
            a(f"v_exp_f32 v{G}, v{G}")
        for k in range(4):
            X = XU + 8 * r + 2 * k
            a(f"v_cvt_pk_bf16_f32 v{X+1}, v{X}, v{X+1}")
        if r == 1:
            a(f"v_add_f32 v{G}, 1.0, v{G}")
        for k in range(4):
            X = XU + 8 * r + 2 * k
            a(f"v_lshlrev_b32 v{X}, 16, v{X+1}")
            a(f"v_and_b32 v{X+1}, 0xffff0000, v{X+1}")
        if r == 1:
            a(f"v_rcp_f32 v{G}, v{G}")
        for k in range(4):
            X = XU + 8 * r + 2 * k
            a(f"v_pk_mul_f32 v[{X}:{X+1}], v[{X}:{X+1}], s[{KS[r]}:{KS[r]+1}] op_sel:[0,1] op_sel_hi:[1,1]")
        for k in range(4):
            X = XU + 8 * r + 2 * k
            a(f"v_cvt_pk_bf16_f32 v{XR+4*r+k}, v{X}, v{X+1}")
        if HT:
            if r == 0:
                a(f"v_lshrrev_b32 v30, 3, v1")
                a(f"v_lshlrev_b32 v30, 18, v30")
                a(f"v_and_b32 v{D+1}, 7, v1")
                a(f"v_lshl_add_u32 v30, v{D+1}, 4, v30")
                a(f"s_lshr_b32 s{sT1}, s{sT0}, 3")
            va = 30
            if r == 3 and SK & 1:
                va = 128
                a(f"s_lshr_b32 s{sT4}, s{sT2}, 7")
                a(f"v_lshrrev_b32 v128, 3, v1")
                a(f"v_lshl_add_u32 v128, v128, 2, s{sT4}")
                a(f"v_mul_u32_u24 v129, 37, v128")
                a(f"v_lshrrev_b32 v129, 8, v129")
                a(f"v_mul_u32_u24 v129, 7, v129")
                a(f"v_sub_u32 v128, v128, v129")
                a(f"v_cmp_le_u32 vcc, 3, v128")
                a(f"v_addc_co_u32 v128, vcc, 0, v128, vcc")
                a(f"v_lshlrev_b32 v128, 7, v128")
                a(f"v_add_u32 v128, {OVF - 384}, v128")
                a(f"s_bitcmp0_b32 s{sT2}, 0")
                a(f"s_cselect_b32 s{sT4}, -1, 0")
                a(f"v_and_b32 v128, s{sT4}, v128")
                a(f"v_add_u32 v128, v128, v30")
            a.vm(f"buffer_store_dwordx4 v[{XR+4*r}:{XR+4*r+3}], v{va}, s[{S2}:{S2+3}], s{sT1} offen offset:{r*128} sc1")
        else:
            a(f"s_add_u32 s{sT1}, s{sT0}, {r*1024}")
            a.vm(f"buffer_store_dwordx4 v[{XR+4*r}:{XR+4*r+3}], v30, s[{S2}:{S2+3}], s{sT1} offen sc1")
    bf16r(a, G, G)
    if GF:
        a(f"v_lshlrev_b32 v{D+1}, 2, v1")
        a(f"s_lshl_b32 s{sT1}, s{sT2}, 8")
    else:
        a(f"v_lshrrev_b32 v{D+1}, 2, v1")
        a(f"s_lshl_b32 s{sT1}, s{sT2}, 7")
        a(f"s_mov_b32 exec_lo, 0x00010001")
        a(f"s_mov_b32 exec_hi, 0x00010001")
    a.vm(f"buffer_store_dword v{G}, v{D+1}, s[{S3}:{S3+3}], s{sT1} offen sc1", "lnst")
    a("s_mov_b64 exec, -1")


class Pre:
    def __init__(self, a, items, slots, name):
        self.a, self.items, self.slots, self.name = a, items, slots, name
        self.nxt = 0
        self.done = set()
        self.allowed = set(range(NSLOT))

    def can(self, k):
        s = self.slots[k]
        return s in self.allowed and all(i in self.done for i in range(k) if self.slots[i] == s)

    def groups(self):
        k = self.nxt
        assert self.can(k)
        self.nxt += 1
        kind, op, st, rf, dst = self.items[k]
        return dma_groups(op, st, self.slots[k] * SLOT, sWB, f"{self.name}{k}")

    def issue(self, maxn=99):
        while maxn > 0 and self.nxt < len(self.items) and self.can(self.nxt):
            emit_groups(self.a, self.groups())
            maxn -= 1

    def process(self, i, stamp=None):
        a = self.a
        kind, op, st, rf, dst = self.items[i]
        if kind == 'cr':
            return
        a.vwait(f"{self.name}{i}")
        if stamp is not None:
            a.stamp(stamp)
        if kind == 'p':
            for j in range(4):
                reads(a, op, self.slots[i] * SLOT, j, dst + j * 8, rf)
            a("s_waitcnt lgkmcnt(0)")
            self.done.add(i)
        else:
            sr, si = self.slots[i - 1] * SLOT, self.slots[i] * SLOT
            for jh in range(2):
                for jj in range(2):
                    reads(a, op, sr, jh * 2 + jj, 32 + jj * 16)
                    reads(a, op, si, jh * 2 + jj, 40 + jj * 16)
                for jj in range(2):
                    a(f"s_waitcnt lgkmcnt({4 - 4 * jj})")
                    jp = jh * 2 + jj
                    hs = 2 * st + (jp >> 1)
                    for q in range(2):
                        for h in range(2):
                            j = 2 * (jp & 1) + h
                            d = dst + hs * 32 + j * 8 + q * 4
                            for r in range(2):
                                re = 32 + jj * 16 + q * 4 + 2 * h + r
                                im = re + 8
                                a(f"v_perm_b32 v{d+2*r}, v{im}, v{re}, s{sP0}")
                                a(f"v_perm_b32 v{d+2*r+1}, v{im}, v{re}, s{sP1}")
            self.done.add(i - 1)
            self.done.add(i)

    def run(self, first, stamp=None, hook=None):
        for i in range(first, len(self.items)):
            self.issue()
            if hook:
                hook(i)
            self.process(i, None if stamp is None else stamp + i)
        self.issue()


FB = [32, 40, 48, 56]


def stream2(a, sop, stages, mf, name, tail=(), sbase=None, hook=None, ns=NSLOT, tail0=None):
    n = len(stages)
    nr = 2 if sop.kind == 'KC' else 4
    tail = list(tail)

    def rl(g):
        i, j = divmod(g, 4)
        return read_lines(sop, (i % ns) * SLOT, j, FB[g % 4])
    a.vwait(f"{name}0")
    if sbase is not None:
        a.stamp(sbase)
    for l in rl(0) + rl(1):
        a(l)
    pend = []
    nxt = 2
    for g in range(4 * n):
        i, j = divmod(g, 4)
        if j == 0:
            assert not pend
            cnt = 0
            while nxt < n and nxt - ns < i and cnt < 2:
                pend += dma_groups(sop, stages[nxt], (nxt % ns) * SLOT, sWB, f"{name}{nxt}")
                nxt += 1
                cnt += 1
            if not pend and tail and i >= tail0:
                pend = tail.pop(0)()
            per = len(pend) // 4
        rd = []
        if g + 2 < 4 * n:
            if j == 2:
                a.vwait(f"{name}{i+1}")
                if sbase is not None:
                    a.stamp(sbase + i + 1)
            rd = rl(g + 2)
        if hook:
            hook(i, j)
        a(f"s_waitcnt lgkmcnt({nr if g + 1 < 4 * n else 0})")
        for k, l in enumerate(mf(stages[i], j, FB[g % 4])):
            a(l)
            for r in rd[k * nr // 4:(k + 1) * nr // 4] if nr == 4 else (rd[k // 2:k // 2 + 1] if k % 2 == 0 else []):
                a(r)
            if pend and (per == 4 or k % 2 == 1):
                emit_groups(a, [pend.pop(0)])
    assert not pend and not tail


def partial_addr(a):
    a("v_and_b32 v14, 31, v1")
    a("v_lshrrev_b32 v15, 5, v1")
    a("v_and_b32 v16, 15, v1")
    a("v_xor_b32 v15, v15, v16")
    a("v_lshlrev_b32 v15, 4, v15")
    a("v_lshl_add_u32 v14, v14, 8, v15")
    a(f"v_add_u32 v40, s{sWB}, v14")
    for k in range(1, 8):
        a(f"v_xor_b32 v{40+k}, {k << 5}, v40")


def write_partial(a, rf, accbase, ldsoff):
    partial_addr(a)
    a("s_nop 7")
    for qm in range(2):
        for qn in range(2):
            for j in range(4):
                acc = accbase + (qm * 2 + qn) * 16 + 4 * j
                a(f"ds_write_b128 v{40 + qm * 4 + j}, {rf}[{acc}:{acc+3}] offset:{ldsoff + qn * 8192}")


def read_partials(a, off, dst):
    a("v_lshrrev_b32 v14, 2, v0")
    a("v_and_b32 v16, 3, v0")
    a("v_lshlrev_b32 v15, 2, v16")
    a("v_and_b32 v17, 15, v14")
    a("v_xor_b32 v15, v15, v17")
    a("v_lshlrev_b32 v15, 4, v15")
    a("v_lshl_add_u32 v40, v14, 8, v15")
    if off:
        a(f"v_add_u32 v40, {off}, v40")
    for i in range(1, 4):
        a(f"v_xor_b32 v{40+i}, {i << 4}, v40")
    for i in range(4):
        a(f"v_add_u32 v{44+i}, {2*WREG}, v{40+i}")
    for w in range(4):
        for i in range(4):
            d = dst + w * 16 + i * 4
            a(f"ds_read_b128 v[{d}:{d+3}], v{40 + (w >> 1) * 4 + i} offset:{(w&1)*WREG}")


def sum_partials(a, src, dst):
    for i in range(16):
        a(f"v_add_f32 v{src+i}, v{src+i}, v{src+16+i}")
        a(f"v_add_f32 v{src+32+i}, v{src+32+i}, v{src+48+i}")
    for i in range(16):
        a(f"v_add_f32 v{dst+i}, v{src+i}, v{src+32+i}")


def make_c_ops(a):
    srd(a, S5, 'cre')
    srd(a, S7, 'cim')
    a(f"s_lshl_b32 s{sC1}, s3, 8")
    a(f"s_lshl_b32 s{sT0}, s{sDT}, 16")
    a(f"s_add_u32 s{sC1}, s{sC1}, s{sT0}")
    a(f"s_mov_b32 s{sP0}, 0x05040100")
    a(f"s_mov_b32 s{sP1}, 0x07060302")
    opr = Op('KC', [S5] * 8, 1024, sC1, 2, 6)
    opi = Op('KC', [S7] * 8, 1024, sC1, 2, 6)
    setup_dma(a, opr)
    setup_frag(a, opr, sWB)
    return [('cr', opr, 0, 'v', 128), ('ci', opi, 0, 'v', 128), ('cr', opr, 1, 'v', 128), ('ci', opi, 1, 'v', 128)]


def c_share_touch2(a):
    a(f"s_and_b32 s{sT0}, s{sR}, 7")
    a(f"s_lshl_b32 s{sT0}, s{sT0}, 1")
    a(f"s_and_b32 s{sT1}, s3, 1")
    a(f"s_add_u32 s{sT0}, s{sT0}, s{sT1}")
    a(f"s_lshl_b32 s{sT0}, s{sT0}, 12")
    a(f"s_lshl_b32 s{sT1}, s{sDT}, 16")
    a(f"s_add_u32 s{sT0}, s{sT0}, s{sT1}")
    a("v_and_b32 v18, 31, v1")
    a("v_lshlrev_b32 v18, 7, v18")
    l1, l2 = a.newlabel("ct"), a.newlabel("ct")
    a("s_cmp_ge_u32 s3, 2")
    a(f"s_cbranch_scc1 {l1}")
    a(f"buffer_load_dword v5, v18, s[{S5}:{S5+3}], s{sT0} offen")
    a(f"s_branch {l2}")
    a.label(l1)
    a.vm(f"buffer_load_dword v5, v18, s[{S7}:{S7+3}], s{sT0} offen")
    a.label(l2)


def mix_start(a, sdst):
    a(f"s_mul_i32 s{sdst}, s3, 6")
    a("s_cmp_eq_u32 s3, 3")
    a(f"s_cselect_b32 s{sdst}, 17, s{sdst}")


def make_w2_op(a, setup_km_frag):
    srd(a, S6, 'w2')
    mix_start(a, sC2)
    a(f"s_lshl_b32 s{sC2}, s{sC2}, 18")
    a(f"s_lshl_b32 s{sT0}, s{sST}, 7")
    a(f"s_add_u32 s{sC2}, s{sC2}, s{sT0}")
    op = Op('KM', [S6] * 8, 4096, sC2, 12, 10)
    setup_dma(a, op)
    if setup_km_frag:
        setup_frag(a, op, sWB)
    return op


def w2_opt_issue(a, op, slot):
    l1 = a.newlabel("w2a")
    a("s_cmp_ge_u32 s3, 2")
    a(f"s_cbranch_scc1 {l1}")
    for pre, ld, tag in dma_groups(op, 5, slot * SLOT, sWB, None):
        for l in pre:
            a(l)
        a(ld)
    a.label(l1)


def w2_opt_read(a, op, slot):
    l2 = a.newlabel("w2b")
    a("s_cmp_ge_u32 s3, 2")
    a(f"s_cbranch_scc1 {l2}")
    a("s_waitcnt vmcnt(0)")
    for j in range(4):
        reads(a, op, slot * SLOT, j, 5 * 32 + j * 8, 'a')
    a("s_waitcnt lgkmcnt(0)")
    a.label(l2)


def poll_issue(a, addr, n, dv):
    l = a.newlabel("pi")
    a("s_cmp_lg_u32 s3, 0")
    a(f"s_cbranch_scc1 {l}")
    addr(a)
    for i in range(n):
        a(f"buffer_load_dwordx2 v[{dv+2*i}:{dv+1+2*i}], v{14+i}, s[{SDBG}:{SDBG+3}], 0 offen sc1")
    a("s_mov_b64 exec, -1")
    a.label(l)


def wait_flags2(a, addr, n=1, dv=18, pre=False):
    l = a.newlabel("poll")
    c = a.newlabel("pollc")
    d = a.newlabel("polld")
    a("s_cmp_lg_u32 s3, 0")
    a(f"s_cbranch_scc1 {d}")
    addr(a)
    a(f"s_mov_b32 s{sCNT}, 20000")
    if pre:
        a(f"s_branch {c}")
    a.label(l)
    for i in range(n):
        a(f"buffer_load_dwordx2 v[{dv+2*i}:{dv+1+2*i}], v{14+i}, s[{SDBG}:{SDBG+3}], 0 offen sc1")
    a.label(c)
    a("s_waitcnt vmcnt(0)")
    a(f"v_cmp_ne_u64 vcc, s[{sN}:{sN+1}], v[{dv}:{dv+1}]")
    for i in range(1, n):
        a(f"v_cmp_ne_u64 s[48:49], s[{sN}:{sN+1}], v[{dv+2*i}:{dv+1+2*i}]")
        a(f"s_or_b64 vcc, vcc, s[48:49]")
    a(f"s_cbranch_vccz {d}")
    if SLEEP:
        a(f"s_sleep {SLEEP}")
    a(f"s_sub_u32 s{sCNT}, s{sCNT}, 1")
    a(f"s_cmp_lg_u32 s{sCNT}, 0")
    a(f"s_cbranch_scc1 {l}")
    a.label(d)
    a("s_mov_b64 exec, -1")
    a("s_barrier")


def addr_ln(a):
    a("v_lshlrev_b32 v14, 5, v1")
    a("v_add_u32 v15, 2048, v14")
    a("v_add_u32 v16, 4096, v14")


def addr_h(a):
    a(f"s_lshr_b32 s{sT0}, s{sST}, 1")
    a(f"s_lshl_b32 s{sT0}, s{sT0}, 7")
    a(f"s_add_u32 s{sT0}, s{sT0}, {FL_H}")
    a(f"v_lshl_add_u32 v14, v1, 5, s{sT0}")
    a("s_mov_b64 exec, 15")


def addr_u(a):
    a(f"s_lshl_b32 s{sT0}, s{sDT}, 10")
    a(f"s_add_u32 s{sT0}, s{sT0}, {FL_U}")
    a(f"v_lshl_add_u32 v14, v1, 5, s{sT0}")
    a(f"s_mov_b64 exec, {(1 << 22) - 1:#x}")


def ln_loads(a):
    srd(a, S0, 'x')
    srd(a, S1, 'gw')
    a(f"s_mul_i32 s{sFLG}, s{sXCD}, 24")
    a(f"s_mul_i32 s{sT1}, s{sXCD}, 20")
    a(f"s_add_u32 s{sT1}, s{sT1}, 16")
    a(f"s_cmp_ge_u32 s{sXCD}, 4")
    a(f"s_cselect_b32 s{sFLG}, s{sT1}, s{sFLG}")
    a(f"s_add_u32 s{sFLG}, s{sFLG}, s{sR}")
    a(f"s_mul_i32 s{sT2}, s{sFLG}, 3")
    a(f"s_add_u32 s{sT2}, s{sT2}, s3")
    a(f"s_min_u32 s{sT2}, s{sT2}, 511")
    a(f"s_lshl_b32 s{sT0}, s{sT2}, 12")
    a("v_lshlrev_b32 v30, 4, v1")
    l = a.newlabel("lnl")
    a("s_cmp_eq_u32 s3, 3")
    a(f"s_cbranch_scc1 {l}")
    for r in range(LNR):
        a(f"s_add_u32 s{sT1}, s{sT0}, {r*1024}")
        a.vm(f"buffer_load_dwordx4 v[{32+4*r}:{35+4*r}], v30, s[{S0}:{S0+3}], s{sT1} offen", "lnx")
    a.vm(f"buffer_load_dwordx4 v[48:51], v30, s[{S1}:{S1+3}], 0 offen", "lnx")
    a.label(l)
    srdws(a, S2, 'hln')
    srdws(a, S3, 'g')


def bu_touch2(a):
    a(f"s_cmp_ge_u32 s{sR}, 8")
    a(f"s_cselect_b32 s{S7}, s{KP['bim']}, s{KP['bre']}")
    a(f"s_cselect_b32 s{S7+1}, s{KP['bim']+1}, s{KP['bre']+1}")
    a(f"s_and_b32 s48, s{sXCD}, 1")
    a(f"s_lshl_b32 s48, s48, 18")
    a(f"s_mov_b32 s{S7+2}, {SZ['bre']}")
    a(f"s_xor_b32 s50, s{sXCD}, 1")
    a(f"s_lshl_b32 s50, s50, 18")
    a(f"s_cmp_ge_u32 s{sR}, 16")
    a(f"s_cselect_b32 s{S7}, s{KP['x']}, s{S7}")
    a(f"s_cselect_b32 s{S7+1}, s{KP['x']+1}, s{S7+1}")
    a(f"s_cselect_b32 s{S7+2}, {SZ['x']}, s{S7+2}")
    a(f"s_cselect_b32 s48, s50, s48")
    a(f"s_and_b32 s49, s{sR}, 7")
    a(f"s_and_b32 s{S7+1}, s{S7+1}, 0xffff")
    a(f"s_mov_b32 s{S7+3}, 0x00020000")
    a(f"s_lshl_b32 s49, s49, 2")
    a(f"s_add_u32 s49, s49, s3")
    a(f"s_lshl_b32 s49, s49, 13")
    a(f"s_add_u32 s48, s48, s49")
    a("v_lshlrev_b32 v18, 7, v1")
    a.vm(f"buffer_load_dword v5, v18, s[{S7}:{S7+3}], s48 offen")


def tlb_touch(a):
    def sel(slot, keys):
        for w, k in enumerate(keys):
            sz = WSTOP if k == 'ws' else SZ[k]
            if w == 0:
                a(f"s_mov_b32 s{slot}, s{KP[k]}")
                a(f"s_mov_b32 s{slot+1}, s{KP[k]+1}")
                a(f"s_mov_b32 s{slot+2}, {sz}")
            else:
                a(f"s_cmp_eq_u32 s3, {w}")
                a(f"s_cselect_b32 s{slot}, s{KP[k]}, s{slot}")
                a(f"s_cselect_b32 s{slot+1}, s{KP[k]+1}, s{slot+1}")
                a(f"s_cselect_b32 s{slot+2}, {sz}, s{slot+2}")
        a(f"s_and_b32 s{slot+1}, s{slot+1}, 0xffff")
        a(f"s_mov_b32 s{slot+3}, 0x00020000")
    sel(S6, ('ws', 'out', 'w2', 'cre'))
    sel(S7, ('dsk', 'b2', 'cim', 'b1'))
    a(f"v_lshlrev_b32 v14, {TT}, v1")
    a.vm(f"buffer_load_dword v5, v14, s[{S6}:{S6+3}], 0 offen")
    a.vm(f"buffer_load_dword v5, v14, s[{S7}:{S7+3}], 0 offen")


def need_row(a, vn, vt):
    a(f"v_bfe_u32 v{vt}, v{vn}, 6, 2")
    a(f"v_lshlrev_b32 v{vt}, 9, v{vt}")
    a(f"v_and_or_b32 v{vt}, v{vn}, 63, v{vt}")
    a(f"v_lshrrev_b32 v{vn}, 8, v{vn}")
    a(f"v_and_b32 v{vn}, 7, v{vn}")
    a(f"v_lshl_or_b32 v{vn}, v{vn}, 6, v{vt}")


def w1_touch(a, t):
    a(f"s_lshl_b32 s{sT0}, s{sR}, 2")
    a(f"s_add_u32 s{sT0}, s{sT0}, s3")
    a(f"s_add_u32 s{sT0}, s{sT0}, {t*96}")
    a(f"s_mul_i32 s{sT0}, s{sT0}, 9")
    a("v_mul_u32_u24 v17, 37, v1")
    a("v_lshrrev_b32 v17, 8, v17")
    a("v_mul_u32_u24 v18, 7, v17")
    a("v_sub_u32 v18, v1, v18")
    a(f"v_add_u32 v17, s{sT0}, v17")
    need_row(a, 17, 16)
    a("v_mul_u32_u24 v17, 2752, v17")
    a("v_lshl_add_u32 v18, v18, 7, v17")
    if t == 2:
        l = a.newlabel("wt")
        a(f"s_cmp_ge_u32 s{sT0}, 2048")
        a(f"s_cbranch_scc1 {l}")
        a(f"buffer_load_dword v5, v18, s[{S4}:{S4+3}], s{sFB} offen")
        a.label(l)
    else:
        a.vm(f"buffer_load_dword v5, v18, s[{S4}:{S4+3}], s{sFB} offen")


def hln_touch(a):
    l = a.newlabel("ht")
    a(f"s_cmp_ge_u32 s{sR}, 20")
    a(f"s_cbranch_scc1 {l}")
    a(f"s_lshl_b32 s{sT0}, s{sR}, 2")
    a(f"s_add_u32 s{sT0}, s{sT0}, s3")
    a(f"s_lshl_b32 s{sT1}, s{sT0}, 4")
    a(f"s_and_b32 s{sT2}, s{sXCD}, 1")
    a(f"s_lshl_b32 s{sT2}, s{sT2}, 9")
    a("v_and_b32 v18, 3, v1")
    for t in range(2):
        a("v_lshrrev_b32 v17, 2, v1")
        a(f"v_add_u32 v17, s{sT1}, v17")
        if t:
            a(f"v_add_u32 v17, 1280, v17")
        need_row(a, 17, 16)
        a("v_lshlrev_b32 v17, 10, v17")
        a("v_lshl_add_u32 v17, v18, 7, v17")
        if t:
            a(f"s_cmp_ge_u32 s{sT0}, 48")
            a(f"s_cbranch_scc1 {l}")
        a(f"buffer_load_dword v5, v17, s[{S2}:{S2+3}], s{sT2} offen")
    a.label(l)


def u_touch(a):
    a(f"s_and_b32 s{sT0}, s{sR}, 7")
    a(f"s_lshl_b32 s{sT0}, s{sT0}, 2")
    a(f"s_add_u32 s{sT0}, s{sT0}, s3")
    a(f"s_lshl_b32 s{sT1}, s{sDT}, 5")
    a(f"s_add_u32 s{sT0}, s{sT0}, s{sT1}")
    a(f"s_mul_i32 s{sT0}, s{sT0}, {2*URS}")
    a("v_lshlrev_b32 v17, 7, v1")
    a(f"s_mov_b32 exec_hi, 0xfff")
    a.vm(f"buffer_load_dword v5, v17, s[{S1}:{S1+3}], s{sT0} offen")
    a("s_mov_b64 exec, -1")


def h_touch(a):
    a(f"s_lshr_b32 s{sT0}, s{sR}, 3")
    a(f"s_lshl_b32 s{sT0}, s{sT0}, 2")
    a(f"s_add_u32 s{sT0}, s{sT0}, s3")
    a(f"s_lshl_b32 s{sT1}, s{sST}, 4")
    a(f"s_add_u32 s{sT0}, s{sT0}, s{sT1}")
    a(f"s_lshl_b32 s{sT0}, s{sT0}, 13")
    a("v_lshlrev_b32 v17, 7, v1")
    a.vm(f"buffer_load_dword v5, v17, s[{S0}:{S0+3}], s{sT0} offen")


class Sprinkle(Asm):
    pass


def sprinkled(a, fn, groups, every, skip=0):
    t = Asm()
    t.uid = a.uid
    marks = []
    orig_vm = t.vm

    def vm(s, tag=None):
        marks.append(len(t.lines))
        t(s)
        t.vmq.append(tag)
    t.vm = vm
    fn(t)
    a.uid = t.uid
    cnt = 0
    tags = iter(t.vmq)
    groups = list(groups)
    exec_full = True
    for idx, l in enumerate(t.lines):
        if idx in marks:
            a.lines.append(l)
            a.vmq.append(next(tags))
        else:
            a.lines.append(l)
        if "exec" in l:
            exec_full = "exec, -1" in l
        cnt += 1
        s = l.strip()
        if groups and cnt >= every and idx >= skip and exec_full and s.startswith("v_") and not s.startswith(("v_cmp", "v_readlane", "v_exp", "v_rcp", "v_sqrt", "v_sin", "v_cos")) and "dpp" not in s:
            emit_groups(a, [groups.pop(0)])
            cnt = 0
    emit_groups(a, groups)


import copy
LGI = int(os.environ.get('LGI', '3'))
HT2 = int(os.environ.get('HT2', '0'))
PF3 = int(os.environ.get('PF3', '0'))
EPI = int(os.environ.get('EPI', '0'))
EP2 = int(os.environ.get('EP2', '0'))
OX = int(os.environ.get('OX', '0'))
HX = int(os.environ.get('HX', '0'))
AW2 = int(os.environ.get('AW2', '0'))
LPO = int(os.environ.get('LPO', '-1'))
GP = int(os.environ.get('GP', '0'))
LPN = int(os.environ.get('LPN', '11'))
LPC = int(os.environ.get('LPC', '2'))
LP3D = int(os.environ.get('LP3D', '0'))
EP3 = int(os.environ.get('EP3', '0'))
ASH = int(os.environ.get('ASH', '0'))
UT = int(os.environ.get('UT', '0'))
LGE = int(os.environ.get('LGE', '0'))
LPD = int(os.environ.get('LPD', '0'))
CPF = int(os.environ.get('CPF', '0'))
NCPF = int(os.environ.get('NCPF', '27'))
W1PRE = int(os.environ.get('W1PRE', '0'))
W1B = int(os.environ.get('W1B', '2'))
AW = int(os.environ.get('AW', '0'))
ASC = int(os.environ.get('ASC', '2'))
HG = int(os.environ.get('HG', '9'))
UG = int(os.environ.get('UG', '1'))
sOW, sOU, sCU = 63, 82, 83
AFIRST = int(os.environ.get('AFIRST', '1'))
PFD = int(os.environ.get('PFD', '0'))
ATT = int(os.environ.get('ATT', '1'))
EPRE = int(os.environ.get('EPRE', '2'))
LPF = int(os.environ.get('LPF', '1'))


class Item:
    def __init__(self, name, op, st, kind='p', rf=None, dst=None, mf=None, opt=False):
        self.name, self.op, self.st, self.kind, self.rf, self.dst, self.mf, self.opt = name, op, st, kind, rf, dst, mf, opt
        self.slot = None
        self.extra = None


class Gate:
    def __init__(self, fn, ok):
        self.fn, self.ok = fn, ok


class Ring:
    def __init__(self, a):
        self.a = a
        self.free = list(range(NSLOT))

    def groups(self, it):
        it.slot = self.free.pop(0)
        return dma_groups(it.op, it.st, it.slot * SLOT, sWB, it.name)

    def issue(self, it):
        emit_groups(self.a, self.groups(it))

    def release(self, it):
        self.free.append(it.slot)

    def pump(self, queue, state, maxn=99):
        out = []
        while queue and maxn > 0:
            x = queue[0]
            if isinstance(x, Gate):
                if not x.ok(state) or not self.free:
                    break
                emit_groups(self.a, out)
                out = []
                x.fn()
            else:
                if not self.free:
                    break
                out += self.groups(x)
                maxn -= 1
            queue.pop(0)
        return out


def consume(a, R, it, prev=None):
    a.vwait(it.name)
    if it.kind == 'p':
        if it.opt:
            l = a.newlabel("co")
            a("s_cmp_ge_u32 s3, 2")
            a(f"s_cbranch_scc1 {l}")
        for j in range(4):
            reads(a, it.op, it.slot * SLOT, j, it.dst + j * 8, it.rf)
        a("s_waitcnt lgkmcnt(0)")
        if it.opt:
            a.label(l)
        R.release(it)
    else:
        op, st, dst = it.op, it.st, it.dst
        sr, si = prev.slot * SLOT, it.slot * SLOT
        for jh in range(2):
            for jj in range(2):
                reads(a, op, sr, jh * 2 + jj, 32 + jj * 16)
                reads(a, op, si, jh * 2 + jj, 40 + jj * 16)
            for jj in range(2):
                a(f"s_waitcnt lgkmcnt({4 - 4 * jj})")
                jp = jh * 2 + jj
                hs = 2 * st + (jp >> 1)
                for q in range(2):
                    for h in range(2):
                        j = 2 * (jp & 1) + h
                        d = dst + hs * 32 + j * 8 + q * 4
                        for r in range(2):
                            re = 32 + jj * 16 + q * 4 + 2 * h + r
                            im = re + 8
                            a(f"v_perm_b32 v{d+2*r}, v{im}, v{re}, s{sP0}")
                            a(f"v_perm_b32 v{d+2*r+1}, v{im}, v{re}, s{sP1}")
        R.release(prev)
        R.release(it)


def stream3(a, R, stages, queue, sbase=None, hook=None, keep=0):
    n = len(stages)

    def nrd(g):
        return 2 if stages[g // 4].op.kind == 'KC' else 4

    def rl(g):
        i, j = divmod(g, 4)
        return read_lines(stages[i].op, stages[i].slot * SLOT, j, FB[g % 4])
    a.vwait(stages[0].name)
    if sbase is not None:
        a.stamp(sbase)
    for l in rl(0) + rl(1):
        a(l)
    pend = []
    lskip = None
    for g in range(4 * n):
        i, j = divmod(g, 4)
        it = stages[i]
        first = False
        if j == 0:
            assert not pend
            if it.opt:
                lskip = a.newlabel("sk")
                a("s_cmp_ge_u32 s3, 2")
                a(f"s_cbranch_scc1 {lskip}")
            first = True
        rd = []
        if g + 2 < 4 * n:
            if j == 2:
                a.vwait(stages[i + 1].name)
                if sbase is not None:
                    a.stamp(sbase + i + 1)
        a(f"s_waitcnt lgkmcnt({nrd(g + 1) if g + 1 < 4 * n else 0})")
        if first:
            if i > 0 and i - 1 < n - keep:
                R.release(stages[i - 1])
            if i > 0 and stages[i - 1].extra:
                R.release(stages[i - 1].extra)
            if not it.opt:
                pend = R.pump(queue, i, 2)
            per = len(pend) // 4
        if hook:
            hook(i, j)
        if j == 1 and it.extra:
            x = it.extra
            a.vwait(x.name)
            if x.opt:
                lx = a.newlabel("xo")
                a("s_cmp_ge_u32 s3, 2")
                a(f"s_cbranch_scc1 {lx}")
            for jj in range(4):
                reads(a, x.op, x.slot * SLOT, jj, x.dst + jj * 8, x.rf)
            if x.opt:
                a.label(lx)
        if g + 2 < 4 * n:
            rd = rl(g + 2)
        nr = len(rd)
        for k, l in enumerate(it.mf(it.st, j, FB[g % 4])):
            a(l)
            for r in (rd[k:k + 1] if nr == 4 else (rd[k // 2:k // 2 + 1] if k % 2 == 0 else [])):
                a(r)
            if pend and (per == 4 or k % 2 == 1):
                emit_groups(a, [pend.pop(0)])
    if lskip:
        a.label(lskip)
        a("s_waitcnt lgkmcnt(0)")
    if keep == 0:
        R.release(stages[-1])
    assert not pend


def write_partial2(a, rf, accbase, o0, o1, addr=True):
    if addr:
        partial_addr(a)
    for qm in range(2):
        for qn in range(2):
            for j in range(4):
                acc = accbase + (qm * 2 + qn) * 16 + 4 * j
                a(f"ds_write_b128 v{40 + qm * 4 + j}, {rf}[{acc}:{acc+3}] offset:{(o0, o1)[qn]}")


def read_partials2(a, lst):
    a("v_lshrrev_b32 v14, 2, v0")
    a("v_and_b32 v16, 3, v0")
    a("v_lshlrev_b32 v15, 2, v16")
    a("v_and_b32 v17, 15, v14")
    a("v_xor_b32 v15, v15, v17")
    a("v_lshlrev_b32 v15, 4, v15")
    a("v_and_b32 v17, 31, v14")
    a("v_lshl_add_u32 v40, v17, 8, v15")
    o0, o1, _ = lst[0]
    a("s_cmp_ge_u32 s3, 2")
    a(f"s_cselect_b32 s{sT0}, {o1 - o0}, 0")
    if o0:
        a(f"s_add_u32 s{sT0}, s{sT0}, {o0}")
    a(f"v_add_u32 v40, s{sT0}, v40")
    for i in range(1, 4):
        a(f"v_xor_b32 v{40+i}, {i << 4}, v40")
    for i in range(4):
        a(f"v_add_u32 v{44+i}, {2*WREG}, v{40+i}")
    for p0, p1, dst in lst:
        assert p1 - p0 == o1 - o0 and p0 >= o0
        for w in range(4):
            for i in range(4):
                d = dst + w * 16 + i * 4
                a(f"ds_read_b128 v[{d}:{d+3}], v{40 + (w >> 1) * 4 + i} offset:{(w&1)*WREG + p0 - o0}")


def xw_block(a, rf, accbase, slots, b, va):
    l = a.newlabel("xw")
    a(f"s_cmp_eq_u32 s3, {b}")
    a(f"s_cbranch_scc1 {l}")
    for j in range(4):
        r = accbase + b * 16 + 4 * j
        a(f"ds_write_b128 v{va}, {rf}[{r}:{r+3}] offset:{slots[b >> 1] * SLOT + (b & 1) * 4096 + j * 1024}")
    a.label(l)


def xr_addr(a, slots, va):
    a("s_cmp_ge_u32 s3, 2")
    a(f"s_cselect_b32 s{sT0}, {slots[1]}, {slots[0]}")
    a(f"s_lshl_b32 s{sT0}, s{sT0}, 1")
    a(f"s_and_b32 s{sT1}, s3, 1")
    a(f"s_add_u32 s{sT0}, s{sT0}, s{sT1}")
    a(f"s_lshl_b32 s{sT0}, s{sT0}, 12")
    for k in range(3):
        a(f"s_add_u32 s{sT1}, s3, {k + 1}")
        a(f"s_and_b32 s{sT1}, s{sT1}, 3")
        a(f"s_mul_i32 s{sT1}, s{sT1}, {WREG}")
        a(f"s_add_u32 s{sT1}, s{sT1}, s{sT0}")
        a(f"v_lshl_add_u32 v{va+k}, v1, 4, s{sT1}")


def xr_reads(a, va, dst):
    for k in range(3):
        for j in range(4):
            d = dst + k * 16 + 4 * j
            a(f"ds_read_b128 v[{d}:{d+3}], v{va+k} offset:{j * 1024}")


def own_copy(a, lst):
    le = a.newlabel("oe")
    ls = [a.newlabel("ow") for _ in range(4)]
    for b in range(1, 4):
        a(f"s_cmp_eq_u32 s3, {b}")
        a(f"s_cbranch_scc1 {ls[b]}")
    for b in range(4):
        a.label(ls[b])
        for rf, acc, dst in lst:
            for i in range(16):
                if rf == 'a':
                    a(f"v_accvgpr_read_b32 v{dst+i}, a{acc + b * 16 + i}")
                else:
                    a(f"v_mov_b32 v{dst+i}, v{acc + b * 16 + i}")
        if b < 3:
            a(f"s_branch {le}")
    a.label(le)


def xsum(a, own, src):
    for i in range(16):
        a(f"v_add_f32 v{own+i}, v{own+i}, v{src+i}")
        a(f"v_add_f32 v{src+16+i}, v{src+16+i}, v{src+32+i}")
    for i in range(16):
        a(f"v_add_f32 v{own+i}, v{own+i}, v{src+16+i}")


def nonce_get(a, nv):
    lp = a.newlabel("np")
    ld = a.newlabel("npd")
    a(f"s_mov_b32 s{sCNT}, 20000")
    a.label(lp)
    a(f"v_readfirstlane_b32 s{sN}, v{nv}")
    a(f"v_readfirstlane_b32 s{sN+1}, v{nv+1}")
    a(f"s_cmp_lg_u32 s{sN}, 0")
    a(f"s_cbranch_scc1 {ld}")
    a(f"buffer_load_dwordx2 v[{nv}:{nv+1}], off, s[{SDBG}:{SDBG+3}], 0 sc1")
    a("s_waitcnt vmcnt(0)")
    a(f"s_sub_u32 s{sCNT}, s{sCNT}, 1")
    a(f"s_cmp_lg_u32 s{sCNT}, 0")
    a(f"s_cbranch_scc1 {lp}")
    a.label(ld)
    srdws(a, SDBG, 'fl')


def wave_flag(a, base, only0=False):
    if only0:
        l = a.newlabel("wf")
        a("s_cmp_lg_u32 s3, 0")
        a(f"s_cbranch_scc1 {l}")
    a(f"s_mov_b64 exec, {1 if FS == 5 else hex((1 << (1 << FS - 3)) - 1)}")
    a(f"s_lshl_b32 s{sCNT}, s{sFLG}, {FS}")
    if base:
        a(f"s_add_u32 s{sCNT}, s{sCNT}, {base}")
    a(f"v_mov_b32 v14, s{sN}")
    a(f"v_mov_b32 v15, s{sN+1}")
    s = f"buffer_store_dwordx2 v[14:15], off, s[{SDBG}:{SDBG+3}], s{sCNT} sc1"
    if FS > 5:
        a("v_lshlrev_b32 v16, 3, v1")
        s = f"buffer_store_dwordx2 v[14:15], v16, s[{SDBG}:{SDBG+3}], s{sCNT} offen sc1"
    if only0:
        a(s)
    else:
        a.vm(s)
    a("s_mov_b64 exec, -1")
    if only0:
        a.label(l)


def gaddr_ln(a):
    a(f"s_mul_i32 s{sT0}, s3, 43")
    a(f"s_add_u32 s{sT1}, s3, 1")
    a(f"s_lshr_b32 s{sT1}, s{sT1}, 1")
    a(f"s_min_u32 s{sT1}, s{sT1}, 1")
    a(f"s_sub_u32 s{sT0}, s{sT0}, s{sT1}")
    a(f"s_lshl_b32 s{sT0}, s{sT0}, {FS}")
    a(f"v_lshl_add_u32 v14, v1, {FS}, s{sT0}")
    a(f"s_mov_b32 exec_hi, 0xfff")


def gaddr_h(a):
    a(f"s_lshr_b32 s{sT0}, s{sST}, 1")
    a(f"s_lshl_b32 s{sT0}, s{sT0}, 2")
    a(f"s_add_u32 s{sT0}, s{sT0}, s3")
    a(f"s_lshl_b32 s{sT0}, s{sT0}, {FS+2}")
    a(f"s_add_u32 s{sT0}, s{sT0}, {FL_H}")
    a(f"v_lshl_add_u32 v14, v1, {FS}, s{sT0}")
    a("s_mov_b64 exec, 15")


def gaddr_u(a):
    mix_start(a, sT1)
    a(f"s_mul_i32 s{sT0}, s{sDT}, 22")
    a(f"s_add_u32 s{sT0}, s{sT0}, s{sT1}")
    a(f"s_lshl_b32 s{sT0}, s{sT0}, {FS+2}")
    a(f"s_add_u32 s{sT0}, s{sT0}, {FL_U}")
    a(f"v_lshl_add_u32 v14, v1, {FS}, s{sT0}")
    a("s_cmp_ge_u32 s3, 2")
    a(f"s_cselect_b32 s{sT1}, 20, 24")
    a(f"s_bfm_b32 exec_lo, s{sT1}, 0")
    a("s_mov_b32 exec_hi, 0")


def gate_issue(a, addr, dv, tag):
    addr(a)
    a.vm(f"buffer_load_dwordx2 v[{dv}:{dv+1}], v14, s[{SDBG}:{SDBG+3}], 0 offen sc1", tag)
    a("s_mov_b64 exec, -1")


def gate(a, addr, dv, tag=None):
    l = a.newlabel("poll")
    c = a.newlabel("pollc")
    d = a.newlabel("polld")
    if tag is not None:
        a.vwait(tag)
    addr(a)
    a(f"s_mov_b32 s{sCNT}, 20000")
    if tag is not None:
        a(f"s_branch {c}")
    a.label(l)
    a(f"buffer_load_dwordx2 v[{dv}:{dv+1}], v14, s[{SDBG}:{SDBG+3}], 0 offen sc1")
    a("s_waitcnt vmcnt(0)")
    a.label(c)
    a(f"v_cmp_ne_u64 vcc, s[{sN}:{sN+1}], v[{dv}:{dv+1}]")
    a(f"s_cbranch_vccz {d}")
    if SLEEP:
        a(f"s_sleep {SLEEP}")
    a(f"s_sub_u32 s{sCNT}, s{sCNT}, 1")
    a(f"s_cmp_lg_u32 s{sCNT}, 0")
    a(f"s_cbranch_scc1 {l}")
    a.label(d)
    a("s_mov_b64 exec, -1")


def weight_items(a, km_frag, pfx):
    ci = make_c_ops(a)
    C = [Item(f"{pfx}c{i}", op, st, kind, rf, dst) for i, (kind, op, st, rf, dst) in enumerate(ci)]
    opW2 = make_w2_op(a, km_frag)
    a("s_cmp_ge_u32 s3, 2")
    a(f"s_cselect_b32 s{sOW}, 0x40000000, 0")
    a(f"s_add_u32 s{sOW}, s{sOW}, s{sC2}")
    opo = copy.copy(opW2)
    opo.scur = sOW
    W2 = [Item(f"{pfx}w{st}", opW2, st, 'p', 'a', st * 32) for st in range(5)]
    W2.append(Item(f"{pfx}w5", opo, 5, 'p', 'a', 160, opt=True))
    return C, W2


def mfs(st, j, fr):
    r = []
    for qm in range(2):
        for qn in range(2):
            acc = 192 + (qm * 2 + qn) * 16
            A = 128 + st * 32 + j * 8 + qm * 4
            B = fr + qn * 4
            c = "0" if (st == 0 and j == 0) else f"a[{acc}:{acc+15}]"
            r.append(f"v_mfma_f32_32x32x16_bf16 a[{acc}:{acc+15}], v[{A}:{A+3}], v[{B}:{B+3}], {c}")
    return r


def mfu(st, j, fr):
    r = []
    for qm in range(2):
        for qn in range(2):
            acc = 64 + (qm * 2 + qn) * 16
            A = fr + qm * 4
            B = st * 32 + j * 8 + qn * 4
            c = "0" if (st == 0 and j == 0) else f"v[{acc}:{acc+15}]"
            r.append(f"v_mfma_f32_32x32x16_bf16 v[{acc}:{acc+15}], v[{A}:{A+3}], a[{B}:{B+3}], {c}")
    return r


def tail(a, R, pending, to_issue, pfx, attach=(), hp=False):
    srdws(a, S0, 'h')
    srdws(a, S1, 'u')
    a(f"s_lshl_b32 s{sC0}, s{sST}, 17")
    a(f"s_lshl_b32 s{sT0}, s3, {15 if HT2 else 9}")
    a(f"s_add_u32 s{sC0}, s{sC0}, s{sT0}")
    mix_start(a, sCU)
    a(f"s_lshl_b32 s{sCU}, s{sCU}, {13 if UT else 7}")
    a(f"s_mul_i32 s{sT0}, s{sDT}, {64*URS}")
    a(f"s_add_u32 s{sCU}, s{sCU}, s{sT0}")
    a("s_cmp_ge_u32 s3, 2")
    a(f"s_cselect_b32 s{sOU}, 0x40000000, 0")
    a(f"s_add_u32 s{sOU}, s{sOU}, s{sCU}")
    opHs = Op('KC', [S0] * 8, 128 if HT2 else 2048, sC0, 28, 24, hmap=True)
    opU = Op('KC', [S1] * 8, [URS, 128, 32, 64][UT], sCU, 2, 6)
    opU.q32 = max(UT - 1, 0)
    if HT2:
        opHs.adv = 8192
    if UT:
        opU.adv = 8192
    if SK & 2:
        opHs.sk = sST
    if SK & 4:
        opU.sk = sDT
    opUo = copy.copy(opU)
    opUo.scur = sOU
    setup_dma(a, opHs)
    setup_frag(a, opHs, sWB)
    Hs = [Item(f"{pfx}s{st}", opHs, st, mf=mfs) for st in range(4)]
    Us = [Item(f"{pfx}u{st}", opU, st, mf=mfu) for st in range(5)] + [Item(f"{pfx}u5", opUo, 5, mf=mfu, opt=True)]
    EP = 192
    st8 = {'hp': hp, 'up': False}

    def gh():
        gate(a, gaddr_h, 18, "hp" if st8['hp'] else None)
        a.stamp(7)

    def gu():
        gate(a, gaddr_u, 18, "up" if st8['up'] else None)
        a.stamp(9)
        setup_dma(a, opU)
    seq = pending + to_issue
    attach = list(attach)
    hq = []
    for i, h in enumerate(Hs):
        if ASH:
            if 0 < i <= len(attach):
                h.extra = attach[i - 1]
            hq.append(h)
            if i < len(attach):
                hq.append(attach[i])
            continue
        if i < len(attach):
            h.extra = attach[i]
        hq.append(h)
        if i + 1 < len(attach):
            hq.append(attach[i + 1])
    queue = list(to_issue) + attach[:0 if ASH else 1] + [Gate(gh, lambda s: s[0] == 'r' and s[1] <= HG if isinstance(s, tuple) else True)] + hq + \
        [Gate(gu, lambda s: (not isinstance(s, tuple)) and s >= UG)] + Us
    for k, it in enumerate(seq):
        rem = len(seq) - k
        if rem == min(HG + 1, len(seq)) and not hp:
            gate_issue(a, gaddr_h, 18, "hp")
            st8['hp'] = True
        emit_groups(a, R.pump(queue, ('r', rem)))
        if it.kind == 'cr':
            continue
        consume(a, R, it, seq[k - 1] if it.kind == 'ci' else None)
        a.stamp(48 + k)
    emit_groups(a, R.pump(queue, ('r', 0)))
    a.stamp(6)

    def epi_loads():
        srd(a, S2, 'x')
        srd(a, S3, 'dsk')
        srd(a, S4, 'b2')
        srdws(a, S5, 'g')
        srd(a, S6, 'out')
        a("v_and_b32 v20, 31, v1")
        a(f"s_lshl_b32 s{sT0}, s{sST}, 1")
        a(f"s_and_b32 s{sT1}, s3, 1")
        a(f"s_add_u32 s{sT0}, s{sT0}, s{sT1}")
        a(f"s_lshl_b32 s{sT0}, s{sT0}, 5")
        a(f"v_add_u32 v20, s{sT0}, v20")
        a("v_lshrrev_b32 v21, 5, v1")
        a(f"s_lshl_b32 s{sT0}, s{sDT}, 1")
        a(f"s_lshr_b32 s{sT1}, s3, 1")
        a(f"s_add_u32 s{sT0}, s{sT0}, s{sT1}")
        a(f"s_lshl_b32 s{sT0}, s{sT0}, 5")
        a(f"v_lshl_add_u32 v21, v21, 2, s{sT0}")
        a("v_lshl_add_u32 v22, v20, 9, v21")
        a("v_lshlrev_b32 v23, 1, v22")
        for q in range(4):
            a.vm(f"buffer_load_dwordx2 v[{EP+2*q}:{EP+2*q+1}], v23, s[{S2}:{S2+3}], 0 offen offset:{16*q}")
        a("v_lshlrev_b32 v23, 1, v21")
        for q in range(4):
            a.vm(f"buffer_load_dwordx2 v[{EP+8+2*q}:{EP+9+2*q}], v23, s[{S3}:{S3+3}], 0 offen offset:{16*q}")
        a("v_lshlrev_b32 v23, 1, v20")
        a.vm(f"buffer_load_ushort v{EP+16}, v23, s[{S4}:{S4+3}], 0 offen")
        if GF:
            a("v_lshlrev_b32 v23, 6, v20")
        else:
            a("v_lshrrev_b32 v23, 2, v20")
            a("v_and_b32 v19, 3, v20")
            a("v_lshlrev_b32 v19, 2, v19")
            a("v_lshl_add_u32 v23, v23, 7, v19")
        a.vm(f"buffer_load_dword v{EP+17}, v23, s[{S5}:{S5+3}], 0 offen sc1")
        a(f"v_lshl_add_u32 v{VW}, v1, 4, s{sWB}")
    VW, VRS, VRM = 212, 213, 216
    ssl = []

    def hk(i, j):
        if i == UG - 1 and j == 1:
            gate_issue(a, gaddr_u, 18, "up")
            st8['up'] = True
        if i == 6 and j == 1:
            epi_loads()
        if i == 4 and j == 0:
            a.stamp(8)
        if i == 7:
            if j == 0:
                assert not queue and len(R.free) >= 2
                ssl.extend([R.free.pop(0), R.free.pop(0)])
            xw_block(a, 'a', 192, ssl, j, VW)
        if i == 8 and j == 0:
            xr_addr(a, ssl, VRS)
        if i == 8 and j == 1:
            own_copy(a, [('a', 192, 224)])
    stream3(a, R, Hs + Us, queue, 24, hk)
    assert not queue
    a.stamp(10)
    msl = [R.free.pop(0), R.free.pop(0)]
    a("s_nop 7")
    a("s_nop 7")
    for b in range(4):
        xw_block(a, 'v', 64, msl, b, VW)
    xr_addr(a, msl, VRM)
    own_copy(a, [('v', 64, 240)])
    a("s_waitcnt lgkmcnt(0)")
    a("s_barrier")
    xr_reads(a, VRS, 128)
    xr_reads(a, VRM, 64)
    a("s_waitcnt lgkmcnt(12)")
    xsum(a, 224, 128)
    a("s_waitcnt lgkmcnt(0)")
    xsum(a, 240, 64)
    MX, SS = 240, 224
    a("s_waitcnt vmcnt(0)")
    B2, G, OG = EP + 16, EP + 17, EP + 18
    a(f"v_lshlrev_b32 v{B2}, 16, v{B2}")
    a(f"v_sub_f32 v{OG}, 1.0, v{G}")
    bf16r(a, OG, OG)
    T = 32
    a("v_lshlrev_b32 v23, 2, v22")
    if OX:
        a("v_and_b32 v23, 0xffc, v20")
        a("v_lshl_add_u32 v23, v23, 9, v21")
        a("v_lshrrev_b32 v19, 5, v1")
        a("v_mul_u32_u24 v19, 12, v19")
        a("v_add_u32 v23, v23, v19")
        a("v_and_b32 v19, 3, v1")
        a("v_lshl_add_u32 v23, v19, 2, v23")
        a("v_lshlrev_b32 v23, 2, v23")
    for k in range(8):
        a(f"v_cvt_pk_bf16_f32 v{T}, v{MX+2*k}, v{MX+1+2*k}")
        a(f"v_lshlrev_b32 v{T+1}, 16, v{T}")
        a(f"v_and_b32 v{T}, 0xffff0000, v{T}")
        a(f"v_add_f32 v{T+1}, v{T+1}, v{B2}")
        a(f"v_add_f32 v{T}, v{T}, v{B2}")
        a(f"v_cvt_pk_bf16_f32 v{T}, v{T+1}, v{T}")
        a(f"v_lshlrev_b32 v{T+1}, 16, v{T}")
        a(f"v_and_b32 v{T}, 0xffff0000, v{T}")
        a(f"v_mul_f32 v{T+1}, v{T+1}, v{OG}")
        a(f"v_mul_f32 v{T}, v{T}, v{OG}")
        a(f"v_cvt_pk_bf16_f32 v{T}, v{T+1}, v{T}")
        a(f"v_lshlrev_b32 v{MX+2*k}, 16, v{T}")
        a(f"v_and_b32 v{MX+1+2*k}, 0xffff0000, v{T}")
        a(f"v_lshlrev_b32 v{T+1}, 16, v{EP+k}")
        a(f"v_and_b32 v{T}, 0xffff0000, v{EP+k}")
        a(f"v_lshlrev_b32 v{T+2}, 16, v{EP+8+k}")
        a(f"v_and_b32 v{T+3}, 0xffff0000, v{EP+8+k}")
        a(f"v_mul_f32 v{T+1}, v{T+1}, v{T+2}")
        a(f"v_mul_f32 v{T}, v{T}, v{T+3}")
        a(f"v_cvt_pk_bf16_f32 v{T}, v{T+1}, v{T}")
        a(f"v_lshlrev_b32 v{T+1}, 16, v{T}")
        a(f"v_and_b32 v{T}, 0xffff0000, v{T}")
        a(f"v_fma_f32 v{T+1}, 2.0, v{SS+2*k}, v{T+1}")
        a(f"v_fma_f32 v{T}, 2.0, v{SS+1+2*k}, v{T}")
        a(f"v_mul_f32 v{T+1}, v{T+1}, v{G}")
        a(f"v_mul_f32 v{T}, v{T}, v{G}")
        a(f"v_add_f32 v{MX+2*k}, v{MX+2*k}, v{T+1}")
        a(f"v_add_f32 v{MX+1+2*k}, v{MX+1+2*k}, v{T}")
        if k % 2 == 1 and not OX:
            i = k // 2
            a(f"buffer_store_dwordx4 v[{MX+4*i}:{MX+3+4*i}], v23, s[{S6}:{S6+3}], 0 offen offset:{32*i}")
    if OX:
        D1 = "quad_perm:[1,0,3,2] row_mask:0xf bank_mask:0xf"
        D2 = "quad_perm:[2,3,0,1] row_mask:0xf bank_mask:0xf"
        AB, Q = 64, 80
        PK = [MX, MX + 8, MX + 4, MX + 12]
        a("s_mov_b32 vcc_lo, 0x55555555")
        a("s_mov_b32 vcc_hi, 0x55555555")
        a(f"s_movk_i32 s{sT0}, 0x1000")
        for r in range(4):
            a(f"v_permlane32_swap_b32 v{MX+r}, v{MX+8+r}")
        for r in range(4):
            a(f"v_permlane32_swap_b32 v{MX+4+r}, v{MX+12+r}")
        a("s_nop 1")
        for c in range(2):
            for r in range(4):
                a(f"v_cndmask_b32_dpp v{AB+8*c+r}, v{PK[2*c+1]+r}, v{PK[2*c]+r}, vcc {D1}")
        a("s_not_b64 vcc, vcc")
        for c in range(2):
            for r in range(4):
                a(f"v_cndmask_b32_dpp v{AB+8*c+4+r}, v{PK[2*c]+r}, v{PK[2*c+1]+r}, vcc {D1}")
        a("s_mov_b32 vcc_lo, 0x33333333")
        a("s_mov_b32 vcc_hi, 0x33333333")
        for n in range(2):
            for r in range(4):
                a(f"v_cndmask_b32_dpp v{Q+4*n+r}, v{AB+8+4*n+r}, v{AB+4*n+r}, vcc {D2}")
            a(f"buffer_store_dwordx4 v[{Q+4*n}:{Q+4*n+3}], v23, s[{S6}:{S6+3}], 0 offen offset:{2048*n}")
        a("s_not_b64 vcc, vcc")
        for n in range(2):
            for r in range(4):
                a(f"v_cndmask_b32_dpp v{Q+8+4*n+r}, v{AB+4*n+r}, v{AB+8+4*n+r}, vcc {D2}")
            a(f"buffer_store_dwordx4 v[{Q+8+4*n}:{Q+8+4*n+3}], v23, s[{S6}:{S6+3}], s{sT0} offen offset:{2048*n}")
    if STAMPS:
        a("s_waitcnt vmcnt(0)")
        a.stamp(11)
        a.stamp_flush()
    a("s_endpgm")


def ln_phase(a, R, W):
    l3, lj = a.newlabel("ln3"), a.newlabel("lnj")
    grp = [R.groups(W[i]) for i in range(5)]
    a("s_cmp_eq_u32 s3, 3")
    a(f"s_cbranch_scc1 {l3}")
    a.vwait("lnx")
    a.stamp(12)
    a.vm(f"buffer_load_dwordx2 v[28:29], off, s[{SDBG}:{SDBG+3}], 0 sc1")
    sprinkled(a, ln_compute, sum(grp[:W1PRE], []), 12)
    a.stamp(13)
    emit_groups(a, sum(grp[W1PRE:W1B], []))
    a.stamp(44)
    a.vwait("lnst")
    a.stamp(45)
    a(f"s_branch {lj}")
    a.label(l3)
    if PFD:
        a(f"s_sleep {PFD}")
    if CPF == 1:
        code_pf(a)
    if PF3 == 2:
        c3_pf(a)
    w1_pf(a)
    if PF3 == 1:
        c3_pf(a)
    if CPF == 2:
        code_pf(a)
    a(f"s_waitcnt vmcnt({8 if PF3 else 6})")
    emit_groups(a, sum(grp[:W1B], []))
    a.label(lj)
    a.vmq = [g[2] for g in sum(grp[:W1B], [])]
    nonce_get(a, 28)
    a.stamp(46)
    a("s_barrier")
    wave_flag(a, FL_LN, True)
    a.stamp(47)
    emit_groups(a, sum(grp[W1B:], []))


def code_pf(a):
    name = NAME + "_kernel"
    l = a.newlabel("pc")
    a("s_getpc_b64 s[48:49]")
    a.label(l)
    a(f"s_sub_u32 s48, s48, {l}-{name}")
    a("s_subb_u32 s49, s49, 0")
    a(f"s_min_u32 s{sT0}, s{sR}, 19")
    a(f"s_lshl_b32 s{sT0}, s{sT0}, 7")
    for i in range(NCPF):
        a(f"s_min_u32 s{sT1}, s{sT0}, L_end-{name}")
        a(f"s_load_dword s50, s[48:49], s{sT1}")
        a(f"s_add_u32 s{sT0}, s{sT0}, {20*128}")


def w1_pf(a):
    a(f"s_lshr_b32 s{sT0}, s{sR}, 2")
    a(f"s_sub_u32 s{sT0}, s{sA}, s{sT0}")
    a(f"s_lshl_b32 s{sT0}, s{sT0}, 7")
    a(f"s_and_b32 s{sT1}, s{sXCD}, 1")
    a(f"s_mul_i32 s{sT1}, s{sT1}, {1024*2752}")
    a(f"s_add_u32 s{sT0}, s{sT0}, s{sT1}")
    a(f"s_min_u32 s{sT1}, s{sR}, 19")
    a(f"s_mul_i32 s{sT1}, s{sT1}, 9")
    a("v_mul_u32_u24 v17, 37, v1")
    a("v_lshrrev_b32 v17, 8, v17")
    a("v_mul_u32_u24 v18, 7, v17")
    a("v_sub_u32 v18, v1, v18")
    a(f"v_add_u32 v17, s{sT1}, v17")
    for t in range(6):
        a(f"v_add_u32 v14, {t*180}, v17")
        a("v_min_u32 v14, 1023, v14")
        a("v_bfe_u32 v15, v14, 6, 1")
        a("v_lshlrev_b32 v15, 9, v15")
        a("v_and_or_b32 v15, v14, 63, v15")
        a("v_lshrrev_b32 v14, 7, v14")
        a("v_lshl_or_b32 v14, v14, 6, v15")
        a("v_mul_u32_u24 v14, 2752, v14")
        a("v_lshl_add_u32 v14, v18, 7, v14")
        a(f"buffer_load_dword v5, v14, s[{S4}:{S4+3}], s{sT0} offen")


def c3_pf(a):
    srd(a, S6, 'w2')
    a(f"s_lshr_b32 s{sT0}, s{KP['w2']}, 7")
    a(f"s_sub_u32 s{sT0}, 3, s{sT0}")
    a(f"s_and_b32 s{sT0}, s{sT0}, 7")
    a(f"s_lshr_b32 s{sT1}, s{sXCD}, 1")
    a(f"s_lshl_b32 s{sT1}, s{sT1}, 3")
    a(f"s_add_u32 s{sT0}, s{sT0}, s{sT1}")
    a(f"s_lshl_b32 s{sT0}, s{sT0}, 7")
    a(f"s_min_u32 s{sT1}, s{sR}, 19")
    a(f"s_lshl_b32 s{sT1}, s{sT1}, 18")
    a(f"s_add_u32 s{sT1}, s{sT1}, s{sT0}")
    a("v_lshlrev_b32 v14, 12, v1")
    a(f"buffer_load_dword v5, v14, s[{S6}:{S6+3}], s{sT1} offen")
    a(f"s_cmp_ge_u32 s{sR}, 4")
    a(f"s_cselect_b32 s{S5}, s{KP['cim']}, s{KP['cre']}")
    a(f"s_cselect_b32 s{S5+1}, s{KP['cim']+1}, s{KP['cre']+1}")
    a(f"s_lshr_b32 s{sT1}, s{S5}, 7")
    a(f"s_sub_u32 s{sT1}, 3, s{sT1}")
    a(f"s_and_b32 s{sT1}, s{sT1}, 7")
    a(f"s_lshl_b32 s{sT1}, s{sT1}, 7")
    a(f"s_and_b32 s{sT2}, s{sXCD}, 1")
    a(f"s_lshl_b32 s{sT2}, s{sT2}, 2")
    a(f"s_and_b32 s{sT3}, s{sR}, 3")
    a(f"s_add_u32 s{sT2}, s{sT2}, s{sT3}")
    a(f"s_lshl_b32 s{sT2}, s{sT2}, 16")
    a(f"s_add_u32 s{sT1}, s{sT1}, s{sT2}")
    a(f"s_add_u32 s{sT2}, s{sR}, 12")
    a(f"s_lshl_b32 s{sT2}, s{sT2}, 18")
    a(f"s_add_u32 s{sT2}, s{sT2}, s{sT0}")
    a(f"s_mov_b32 s{S5+2}, {SZ['cre']}")
    a(f"s_cmp_ge_u32 s{sR}, 8")
    a(f"s_cselect_b32 s{S5}, s{KP['w2']}, s{S5}")
    a(f"s_cselect_b32 s{S5+1}, s{KP['w2']+1}, s{S5+1}")
    a(f"s_cselect_b32 s{S5+2}, {SZ['w2']}, s{S5+2}")
    a(f"s_cselect_b32 s{sT1}, s{sT2}, s{sT1}")
    a(f"s_cselect_b32 s{sT2}, 12, 10")
    a(f"s_and_b32 s{S5+1}, s{S5+1}, 0xffff")
    a(f"s_mov_b32 s{S5+3}, 0x00020000")
    a(f"v_lshlrev_b32 v14, s{sT2}, v1")
    a(f"buffer_load_dword v5, v14, s[{S5}:{S5+3}], s{sT1} offen")


def l_pf(a):
    srd(a, S5, 'cre')
    srd(a, S7, 'cim')
    srd(a, S6, 'w2')
    a(f"s_sub_u32 s{sT0}, s{sXCD}, 4")
    a(f"s_lshl_b32 s{sT0}, s{sT0}, 2")
    a(f"s_add_u32 s{sT0}, s{sT0}, s{sR}")
    a(f"s_sub_u32 s{sT0}, s{sT0}, 20")
    a(f"s_lshl_b32 s{sT0}, s{sT0}, 2")
    a(f"s_add_u32 s{sT0}, s{sT0}, s3")
    a(f"s_lshl_b32 s{sT1}, s{sT0}, 13")
    a("v_lshlrev_b32 v14, 7, v1")
    a("v_lshrrev_b32 v15, 5, v1")
    a("v_and_b32 v16, 31, v1")
    a("v_lshlrev_b32 v16, 7, v16")
    a("v_lshl_add_u32 v15, v15, 12, v16")
    a(f"s_lshr_b32 s{sT2}, s{sT0}, 5")
    a(f"s_lshl_b32 s{sT3}, s{sT0}, 1")
    a(f"s_and_b32 s{sT3}, s{sT3}, 63")
    a(f"s_mul_i32 s{sT4}, s{sT2}, {6*64}")
    a(f"s_add_u32 s{sT4}, s{sT4}, s{sT3}")
    a(f"s_lshl_b32 s{sT4}, s{sT4}, 12")
    a(f"s_mul_i32 s{sT2}, s{sT2}, {5*64}")
    a(f"s_add_u32 s{sT2}, s{sT2}, s{sT3}")
    a(f"s_add_u32 s{sT2}, s{sT2}, {12*64}")
    a(f"s_lshl_b32 s{sT2}, s{sT2}, 12")
    for t in range(11):
        if t == 2:
            a(f"buffer_load_dword v5, v14, s[{S5}:{S5+3}], s{sT1} offen")
            a(f"buffer_load_dword v5, v14, s[{S7}:{S7+3}], s{sT1} offen")
        a(f"s_add_u32 s{sT}, s{(sT4, sT2)[t & 1]}, {(t >> 1) * 64 * 4096}")
        a(f"buffer_load_dword v5, v15, s[{S6}:{S6+3}], s{sT} offen")


def l_pf2(a, mid=None):
    srd(a, S6, 'w2')
    a(f"s_bitcmp1_b32 s{sXCD}, 1")
    a(f"s_cselect_b32 s{S4}, s{KP['cim']}, s{KP['cre']}")
    a(f"s_cselect_b32 s{S4+1}, s{KP['cim']+1}, s{KP['cre']+1}")
    a(f"s_and_b32 s{S4+1}, s{S4+1}, 0xffff")
    a(f"s_mov_b32 s{S4+2}, {SZ['cre']}")
    a(f"s_mov_b32 s{S4+3}, 0x00020000")
    a(f"s_sub_u32 s{sT0}, s{sR}, 20")
    a(f"s_lshl_b32 s{sT0}, s{sT0}, 2")
    a(f"s_add_u32 s{sT0}, s{sT0}, s3")
    a(f"s_and_b32 s{sT2}, s{sXCD}, 1")
    a(f"s_lshl_b32 s{sT1}, s{sT2}, 4")
    a(f"s_add_u32 s{sT1}, s{sT1}, s{sT0}")
    a(f"s_lshl_b32 s{sT1}, s{sT1}, 14")
    a(f"s_lshl_b32 s{sT2}, s{sT2}, 3")
    a(f"s_and_b32 s{sT3}, s{sT0}, 7")
    a(f"s_add_u32 s{sT2}, s{sT2}, s{sT3}")
    a(f"s_lshl_b32 s{sT2}, s{sT2}, 14")
    a(f"s_lshr_b32 s{sT3}, s{sXCD}, 1")
    a(f"s_lshl_b32 s{sT3}, s{sT3}, 10")
    a(f"s_add_u32 s{sT2}, s{sT2}, s{sT3}")
    a("v_lshlrev_b32 v14, 7, v1")
    a("v_lshrrev_b32 v15, 4, v1")
    a("v_lshlrev_b32 v15, 12, v15")
    a("v_and_b32 v16, 7, v1")
    a("v_lshl_add_u32 v15, v16, 7, v15")
    a("v_bfe_u32 v16, v1, 3, 1")
    a("v_lshlrev_b32 v16, 11, v16")
    a("v_sub_u32 v16, 2048, v16")
    a("v_add_u32 v15, v15, v16")
    a(f"s_sub_u32 s{sT2}, s{sT2}, 2048")
    lst = [0, 6, 12, 17, 1, 7, 13, 18, 2, 8, 14, 19, 3, 9, 15, 20, 4, 10, 16, 21, 5, 11]
    for t in range(LPN):
        if mid and t == LPO:
            mid()
        if t == LPC:
            a.vm(f"buffer_load_dword v5, v14, s[{S4}:{S4+3}], s{sT1} offen")
            a(f"s_add_u32 s{sT1}, s{sT1}, 8192")
            a.vm(f"buffer_load_dword v5, v14, s[{S4}:{S4+3}], s{sT1} offen")
        a(f"s_mov_b32 s{sT}, {lst[2*t] << 18}")
        a(f"s_cmp_ge_u32 s{sT0}, 8")
        a(f"s_cselect_b32 s{sT}, {lst[2*t+1] << 18}, s{sT}")
        a(f"s_add_u32 s{sT}, s{sT}, s{sT2}")
        a.vm(f"buffer_load_dword v5, v15, s[{S6}:{S6+3}], s{sT} offen")
    return LPN + 2


def g_pf(a, vm=True):
    a(f"s_and_b32 s{sT0}, s{sR}, 3")
    a(f"s_mul_i32 s{sT1}, s{sT0}, 6")
    a(f"s_cmp_eq_u32 s{sT0}, 3")
    a(f"s_cselect_b32 s{sT1}, 17, s{sT1}")
    a(f"s_lshr_b32 s{sT0}, s{sR}, 2")
    a(f"s_add_u32 s{sT1}, s{sT1}, s{sT0}")
    a(f"s_lshl_b32 s{sT1}, s{sT1}, 3")
    a(f"s_and_b32 s{sT0}, s{sXCD}, 1")
    a(f"s_lshl_b32 s{sT0}, s{sT0}, 2")
    a(f"s_add_u32 s{sT1}, s{sT1}, s{sT0}")
    a(f"s_add_u32 s{sT1}, s{sT1}, s3")
    a(f"s_lshl_b32 s{sT1}, s{sT1}, 15")
    a(f"s_lshr_b32 s{sT0}, s{sXCD}, 1")
    a(f"s_lshl_b32 s{sT0}, s{sT0}, 10")
    a(f"s_add_u32 s{sT1}, s{sT1}, s{sT0}")
    a("v_lshrrev_b32 v15, 3, v1")
    a("v_lshlrev_b32 v15, 12, v15")
    a("v_and_b32 v16, 7, v1")
    a("v_lshl_add_u32 v15, v16, 7, v15")
    (a.vm if vm else a)(f"buffer_load_dword v5, v15, s[{S6}:{S6+3}], s{sT1} offen")


def l_pf4(a):
    srd(a, S6, 'w2')
    a(f"s_bitcmp1_b32 s{sXCD}, 1")
    a(f"s_cselect_b32 s{S5}, s{KP['cim']}, s{KP['cre']}")
    a(f"s_cselect_b32 s{S5+1}, s{KP['cim']+1}, s{KP['cre']+1}")
    a(f"s_and_b32 s{S5+1}, s{S5+1}, 0xffff")
    a(f"s_mov_b32 s{S5+2}, {SZ['cre']}")
    a(f"s_mov_b32 s{S5+3}, 0x00020000")
    a(f"s_sub_u32 s{sT0}, s{sR}, 20")
    a(f"s_lshl_b32 s{sT0}, s{sT0}, 2")
    a(f"s_add_u32 s{sT0}, s{sT0}, s3")
    a(f"s_and_b32 s{sT2}, s{sXCD}, 1")
    a(f"s_lshl_b32 s{sT1}, s{sT2}, 4")
    a(f"s_add_u32 s{sT1}, s{sT1}, s{sT0}")
    a(f"s_lshl_b32 s{sT1}, s{sT1}, 14")
    a("v_lshlrev_b32 v14, 7, v1")
    a(f"buffer_load_dword v5, v14, s[{S5}:{S5+3}], s{sT1} offen")
    a(f"s_add_u32 s{sT1}, s{sT1}, 8192")
    a(f"buffer_load_dword v5, v14, s[{S5}:{S5+3}], s{sT1} offen")
    g_pf(a, False)
    return 3


def l_pf3(a):
    srd(a, S6, 'w2')
    srd(a, S5, 'cre')
    srd(a, S7, 'cim')
    a(f"s_sub_u32 s{sT0}, s{sR}, 20")
    a(f"s_and_b32 s{sT2}, s{sXCD}, 1")
    a(f"s_lshl_b32 s{sT1}, s{sT2}, 2")
    a(f"s_add_u32 s{sT1}, s{sT1}, s{sT0}")
    a(f"s_lshl_b32 s{sT1}, s{sT1}, 2")
    a(f"s_add_u32 s{sT1}, s{sT1}, s3")
    a(f"s_lshl_b32 s{sT1}, s{sT1}, 14")
    a(f"s_mul_i32 s{sT3}, s{sT0}, 6")
    a(f"s_cmp_eq_u32 s{sT0}, 3")
    a(f"s_cselect_b32 s{sT3}, 17, s{sT3}")
    a(f"s_lshl_b32 s{sT3}, s{sT3}, 18")
    a(f"s_lshr_b32 s{sT4}, s{sXCD}, 1")
    a(f"s_lshl_b32 s{sT4}, s{sT4}, 10")
    a(f"s_add_u32 s{sT3}, s{sT3}, s{sT4}")
    a(f"s_lshl_b32 s{sT2}, s{sT2}, 2")
    a(f"s_add_u32 s{sT2}, s{sT2}, s3")
    a(f"s_lshl_b32 s{sT2}, s{sT2}, 15")
    a(f"s_add_u32 s{sT2}, s{sT2}, s{sT3}")
    a(f"s_sub_u32 s{sT2}, s{sT2}, 2048")
    a(f"s_lshl_b32 s{sT4}, s3, 16")
    a(f"s_add_u32 s{sT3}, s{sT3}, s{sT4}")
    a("v_lshlrev_b32 v14, 7, v1")
    a("v_lshrrev_b32 v15, 3, v1")
    a("v_lshlrev_b32 v15, 12, v15")
    a("v_and_b32 v16, 7, v1")
    a("v_lshl_add_u32 v15, v16, 7, v15")
    n = 0
    for t in range(6):
        a(f"s_add_u32 s{sT}, s{sT2}, {t << 18}")
        a(f"buffer_load_dword v5, v15, s[{S6}:{S6+3}], s{sT} offen")
        n += 1
    for t in range(6):
        if LP3D:
            a(f"s_sleep {LP3D}")
        if t == 2:
            for k in range(2):
                a(f"s_add_u32 s{sT}, s{sT1}, {k * 8192}")
                a(f"buffer_load_dword v5, v14, s[{S5}:{S5+3}], s{sT} offen")
                a(f"buffer_load_dword v5, v14, s[{S7}:{S7+3}], s{sT} offen")
                n += 2
        for k in range(2):
            a(f"s_add_u32 s{sT}, s{sT3}, {(t << 18) + k * 32768}")
            a(f"buffer_load_dword v5, v15, s[{S6}:{S6+3}], s{sT} offen")
            n += 1
    return n


def kernel(a):
    name = NAME + "_kernel"
    a.raw(f".globl {name}")
    a.raw(".p2align 8")
    a.raw(f".type {name},@function")
    a.label(name)
    a("s_cmp_ge_u32 s2, 256")
    a("s_cbranch_scc1 L_end")
    a("s_load_dwordx16 s[64:79], s[0:1], 0")
    a("s_load_dwordx16 s[80:95], s[0:1], 64")
    a("s_load_dwordx4 s[96:99], s[0:1], 128")
    a("v_and_b32 v1, 63, v0")
    a("v_lshrrev_b32 v2, 6, v0")
    if STAMPS:
        a("v_mov_b32 v31, 0")
    a(f"s_and_b32 s{sXCD}, s2, 7")
    a(f"s_lshr_b32 s{sR}, s2, 3")
    if AFIRST:
        a(f"s_add_u32 s{sR}, s{sR}, 24")
        a(f"s_and_b32 s{sR}, s{sR}, 31")
    a("v_readfirstlane_b32 s3, v2")
    a(f"s_lshr_b32 s{sST}, s{sXCD}, 1")
    a(f"s_lshl_b32 s{sST}, s{sST}, 3")
    a(f"s_and_b32 s{sT0}, s{sR}, 7")
    a(f"s_add_u32 s{sST}, s{sST}, s{sT0}")
    a(f"s_and_b32 s{sDT}, s{sXCD}, 1")
    a(f"s_lshl_b32 s{sDT}, s{sDT}, 2")
    a(f"s_lshr_b32 s{sT0}, s{sR}, 3")
    a(f"s_add_u32 s{sDT}, s{sDT}, s{sT0}")
    a(f"s_mul_i32 s{sWB}, s3, {WREG}")
    a("s_waitcnt lgkmcnt(0)")
    a.stamp(0)
    a.cstamp(62)
    srd(a, SDBG, 'dbg')
    a("s_lshl_b32 s48, s2, 2")
    a("s_add_u32 s48, s48, s3")
    a("s_cmp_lg_u32 s48, 0")
    a("s_cbranch_scc1 L_nonw")
    a(f"s_memrealtime s[{sN}:{sN+1}]")
    a("s_mov_b64 exec, 1")
    a("s_waitcnt lgkmcnt(0)")
    a(f"s_or_b32 s{sN}, s{sN}, 1")
    a(f"v_mov_b32 v14, s{sN}")
    a(f"v_mov_b32 v15, s{sN+1}")
    a(f"buffer_store_dwordx2 v[14:15], off, s[{SDBG}:{SDBG+3}], 0 sc1")
    a("s_mov_b64 exec, -1")
    a.label("L_nonw")
    a(f"s_cmp_ge_u32 s{sR}, 24")
    a("s_cbranch_scc1 L_apath")
    a(f"s_cmp_ge_u32 s{sXCD}, 4")
    a(f"s_cselect_b32 s{sT4}, 20, 24")
    a(f"s_cmp_ge_u32 s{sR}, s{sT4}")
    a("s_cbranch_scc1 L_lpath")
    ln_loads(a)
    bu_touch2(a)
    if TT:
        tlb_touch(a)
    a.vm(f"buffer_load_dwordx2 v[28:29], off, s[{SDBG}:{SDBG+3}], 0 sc1")
    a(f"s_lshr_b32 s{sT3}, s{sXCD}, 1")
    a(f"s_mul_i32 s{sA}, s{sT3}, 6")
    a(f"s_cmp_eq_u32 s{sT3}, 3")
    a(f"s_cselect_b32 s{sA}, 17, s{sA}")
    a(f"s_lshr_b32 s{sT3}, s{sR}, 2")
    a(f"s_add_u32 s{sA}, s{sA}, s{sT3}")
    a(f"s_and_b32 s{sB}, s{sXCD}, 1")
    a(f"s_lshl_b32 s{sB}, s{sB}, 2")
    a(f"s_and_b32 s{sT4}, s{sR}, 3")
    a(f"s_add_u32 s{sB}, s{sB}, s{sT4}")

    srd(a, S4, 'w1')
    a(f"s_mul_i32 s{sC0}, s3, {512*2752}")
    a(f"s_lshl_b32 s{sT1}, s{sA}, 7")
    a(f"s_add_u32 s{sC0}, s{sC0}, s{sT1}")
    opW1 = Op('KM', [S4] * 8, 2752, sC0, 4, 10)
    setup_dma(a, opW1)
    R = Ring(a)
    W = [Item(f"g{st}", opW1, st, 'p', 'a', st * 32) for st in range(8)]
    setup_frag(a, opW1, sWB)
    a(";WARM g")
    a.stamp(15)
    ln_phase(a, R, W)
    a.stamp(1)
    a(f"s_mul_i32 s{sFLG}, s{sB}, 22")
    a(f"s_add_u32 s{sFLG}, s{sFLG}, s{sA}")
    a(f"s_lshl_b32 s{sFLG}, s{sFLG}, 2")
    a(f"s_add_u32 s{sFLG}, s{sFLG}, s3")
    C, W2 = weight_items(a, False, "G")
    if GP == 1:
        g_pf(a)
    srd(a, S1, 'b1')
    a("v_lshrrev_b32 v19, 5, v1")
    a("v_lshlrev_b32 v19, 3, v19")
    a(f"s_lshl_b32 s{sT1}, s{sA}, 1")
    a(f"s_lshr_b32 s{sT0}, s3, 1")
    a(f"s_add_u32 s{sT1}, s{sT1}, s{sT0}")
    a(f"s_lshl_b32 s{sT1}, s{sT1}, 6")
    for q in range(4):
        a.vm(f"buffer_load_dwordx2 v[{20+2*q}:{21+2*q}], v19, s[{S1}:{S1+3}], s{sT1} offen offset:{16*q}")
    srdws(a, S3, 'u')
    a(f"s_lshl_b32 s{sC3}, s3, {16 if HT else 19}")
    a(f"s_lshl_b32 s{sT1}, s{sB}, {18 if HT else 7}")
    a(f"s_add_u32 s{sC3}, s{sC3}, s{sT1}")
    opH = Op('KM', [S2] * 8, 128 if HT else 1024, sC3, 13, 10)
    if SK & 1:
        opH.sk = sB
    setup_dma(a, opH)

    def mf1(st, j, fr):
        r = []
        for qm in range(2):
            for qn in range(2):
                acc = 64 + (qm * 2 + qn) * 16
                A = st * 32 + j * 8 + qm * 4
                B = fr + qn * 4
                c = "0" if (st == 0 and j == 0) else f"v[{acc}:{acc+15}]"
                r.append(f"v_mfma_f32_32x32x16_bf16 v[{acc}:{acc+15}], a[{A}:{A+3}], v[{B}:{B+3}], {c}")
        return r
    Hn = [Item(f"h{st}", opH, st, mf=mf1) for st in range(8)]
    wq, hq, order = W[5:], Hn[:5], []
    for i in range(8):
        if wq and (i < LGI or (i - LGI) % 2 == 1 or not hq):
            order.append(wq.pop(0))
        else:
            order.append(hq.pop(0))
    for i in range(8):
        consume(a, R, W[i])
        a.stamp(36 + i)
        if i == LGI - 1 and LGE:
            gate_issue(a, gaddr_ln, 18, "lp")
        if i == LGI:
            gate(a, gaddr_ln, 18, "lp")
            a.stamp(3)
        R.issue(order[i])
        if GP == 2 + i:
            g_pf(a)
        if i == LGI - 1 and not LGE:
            gate_issue(a, gaddr_ln, 18, "lp")
    a.stamp(2)
    stream3(a, R, Hn, Hn[5:] + W2[:3], 16, None, keep=2)
    a.stamp(4)
    gsl = [Hn[6].slot, Hn[7].slot]
    a(f"v_lshl_add_u32 v40, v1, 4, s{sWB}")
    xr_addr(a, gsl, 41)
    a("s_nop 7")
    for b in range(4):
        xw_block(a, 'v', 64, gsl, b, 40)
    own_copy(a, [('v', 64, 128)])
    rest = C if ATT else W2[3:] + C
    if EP3:
        rest = C + W2[3:3 + EP3 - 1]
    nx = [0]

    def epi(k):
        if EPI > k:
            if EP2 and k == 2:
                while R.free:
                    R.issue(rest[nx[0]])
                    nx[0] += 1
            consume(a, R, W2[k])
            if EP2 and k < 2:
                return
            R.issue(rest[nx[0]])
            nx[0] += 1
    epi(0)
    a("s_waitcnt lgkmcnt(0)")
    a("s_barrier")
    xr_reads(a, 41, 144)
    a("s_waitcnt lgkmcnt(0)")
    xsum(a, 128, 144)
    for i in range(16):
        a.lines[-16 + i] = f"    v_add_f32 v{64+i}, v{128+i}, v{160+i}"
    epi(1)
    for k in range(8):
        a(f"v_cvt_pk_bf16_f32 v80, v{64+2*k}, v{65+2*k}")
        a(f"v_lshlrev_b32 v81, 16, v80")
        a(f"v_and_b32 v80, 0xffff0000, v80")
        a(f"v_lshlrev_b32 v82, 16, v{20+k}")
        a(f"v_and_b32 v83, 0xffff0000, v{20+k}")
        a(f"v_add_f32 v81, v81, v82")
        a(f"v_add_f32 v80, v80, v83")
        a(f"v_cvt_pk_bf16_f32 v80, v81, v80")
        a(f"v_lshlrev_b32 v{64+2*k}, 16, v80")
        a(f"v_and_b32 v{65+2*k}, 0xffff0000, v80")
    c1 = -2 * 0.7978845608028654 * 1.4426950408889634
    c2 = c1 * 0.044715
    a(f"s_mov_b32 s{sT0}, {f2u(c1):#x}")
    a(f"s_mov_b32 s{sT1}, {f2u(c2):#x}")
    a(f"v_mov_b32 v100, s{sT0}")
    for i in range(16):
        a(f"v_mul_f32 v{80+i}, v{64+i}, v{64+i}")
        a(f"v_fma_f32 v{80+i}, v{80+i}, s{sT1}, v100")
        a(f"v_mul_f32 v{80+i}, v{80+i}, v{64+i}")
        a(f"v_exp_f32 v{80+i}, v{80+i}")
    for i in range(16):
        a(f"v_add_f32 v{80+i}, 1.0, v{80+i}")
        a(f"v_rcp_f32 v{80+i}, v{80+i}")
    a("s_nop 0")
    for i in range(16):
        a(f"v_mul_f32 v{64+i}, v{64+i}, v{80+i}")
    for k in range(8):
        a(f"v_cvt_pk_bf16_f32 v{80+k}, v{64+2*k}, v{65+2*k}")
    if EP3:
        epi(2)
    if EP2 or EP3:
        gate_issue(a, gaddr_h, 18, "hp")
    a(f"s_lshl_b32 s{sT0}, s{sA}, 1")
    a(f"s_lshr_b32 s{sT1}, s3, 1")
    a(f"s_add_u32 s{sT0}, s{sT0}, s{sT1}")
    a(f"s_cmp_ge_u32 s{sT0}, 43")
    a(f"s_cselect_b32 s{sT1}, 0, -1")
    for k in range(8):
        a(f"v_and_b32 v{80+k}, s{sT1}, v{80+k}")
    if UT:
        a(f"s_and_b32 s{sT1}, s{sT0}, 1")
        a(f"s_lshl_b32 s{sT1}, s{sT1}, {12 if UT >= 2 else 6}")
        a(f"s_mul_i32 s{sT0}, s{sB}, 22")
        a(f"s_add_u32 s{sT0}, s{sT0}, s{sA}")
        a(f"s_lshl_b32 s{sT0}, s{sT0}, 13")
        a(f"s_add_u32 s{sT0}, s{sT0}, s{sT1}")
    else:
        a(f"s_lshl_b32 s{sT0}, s{sT0}, 6")
    a("v_lshrrev_b32 v17, 5, v1")
    a(f"v_lshl_add_u32 v17, v17, 4, s{sT0}")
    for c in range(2):
        for r in range(2):
            a(f"v_permlane32_swap_b32 v{80+4*c+r}, v{82+4*c+r}")
    if UT == 3:
        a("v_bfe_u32 v15, v1, 4, 1")
        a("v_lshl_add_u32 v17, v15, 5, v17")
        for k in range(4):
            a(f"v_permlane16_swap_b32 v{80+k}, v{84+k}")
    a(f"s_lshl_b32 s{sT0}, s{sB}, 1")
    a(f"s_and_b32 s{sT1}, s3, 1")
    if UT:
        a(f"s_mov_b32 s{sT0}, s{sT1}")
    else:
        a(f"s_add_u32 s{sT0}, s{sT0}, s{sT1}")
    a(f"s_lshl_b32 s{sT0}, s{sT0}, 5")
    a(f"v_and_b32 v14, {15 if UT == 3 else 31}, v1")
    a(f"v_add_u32 v14, s{sT0}, v14")
    if SK & 4:
        a(f"s_lshr_b32 s{sT1}, s{sXCD}, 1")
        sk_off(a, sT3, sB, sT1)
        a("v_and_b32 v15, 7, v1")
        a("v_cmp_eq_u32 vcc, 3, v15")
        a(f"v_mov_b32 v15, s{sT3}")
        a("v_cndmask_b32 v15, 0, v15, vcc")
        a("v_add_u32 v17, v17, v15")
    a(f"v_mul_u32_u24 v14, {[URS, 128, 32, 64][UT]}, v14")
    a("v_add_u32 v14, v14, v17")
    a.vm(f"buffer_store_dwordx4 v[80:83], v14, s[{S3}:{S3+3}], 0 offen sc1")
    a.vm(f"buffer_store_dwordx4 v[84:87], v14, s[{S3}:{S3+3}], 0 offen offset:{[32, 32, 2048, 1024][UT]} sc1", "ust")
    a.stamp(14)
    if not EP3:
        epi(2)
    a("s_barrier")
    R.release(Hn[6])
    R.release(Hn[7])
    if EP3:
        for it in rest[3:5]:
            R.issue(it)
        consume(a, R, rest[1], rest[0])
        for it in rest[5:]:
            R.issue(it)
        a.vwait("ust")
        wave_flag(a, FL_U)
        a.stamp(5)
        tail(a, R, rest[2:], [], "G", W2[3 + EP3 - 1:], hp=True)
        return_g = True
    else:
        return_g = False
    if not return_g:
        for i in range(EPRE):
            if nx[0] < len(rest):
                R.issue(rest[nx[0]])
                nx[0] += 1
        for i in range(min(EPI, 3), 3):
            consume(a, R, W2[i])
        a.vwait("ust")
        wave_flag(a, FL_U)
        a.stamp(5)
        tail(a, R, rest[:nx[0]], rest[nx[0]:], "G", W2[3:] if ATT else (), hp=bool(EP2))

    a.label("L_lpath")
    a.vmq = []
    bu_touch2(a)
    if TT:
        tlb_touch(a)
    a.vm(f"buffer_load_dwordx2 v[28:29], off, s[{SDBG}:{SDBG+3}], 0 sc1", "nc")
    if LPO >= 0:
        C, W2 = weight_items(a, True, "L")
        R = Ring(a)
        seq = C + W2

        def mid():
            for it in seq[:5]:
                R.issue(it)
        l_pf2(a, mid)
        a(";WARM l")
        a.vwait("nc")
        nonce_get(a, 28)
        a.stamp(1)
        tail(a, R, seq[:5], seq[5:], "L")
    elif LPF:
        for _ in range(LPD // 64):
            a(f"s_sleep 64")
        npf = {1: l_pf, 2: l_pf2, 3: l_pf3, 4: l_pf4}[LPF](a) or 13
        a(";WARM l")
        a(f"s_waitcnt vmcnt({npf})")
    else:
        a("s_waitcnt vmcnt(0)")
    if LPO < 0:
        a.vmq = []
        nonce_get(a, 28)
        a.stamp(1)
        C, W2 = weight_items(a, True, "L")
        R = Ring(a)
        tail(a, R, [], C + W2, "L")

    a.label("L_apath")
    a.vmq = []
    srd(a, S0, 'x')
    srd(a, S1, 'bre')
    srd(a, S2, 'bim')
    a(f"s_lshr_b32 s{sA}, s{sXCD}, 1")
    a(f"s_lshl_b32 s{sA}, s{sA}, 2")
    a(f"s_and_b32 s{sT0}, s{sR}, 3")
    a(f"s_add_u32 s{sA}, s{sA}, s{sT0}")
    a(f"s_and_b32 s{sB}, s{sXCD}, 1")
    a(f"s_lshl_b32 s{sB}, s{sB}, 1")
    a(f"s_lshr_b32 s{sT0}, s{sR}, 2")
    a(f"s_and_b32 s{sT0}, s{sT0}, 1")
    a(f"s_add_u32 s{sB}, s{sB}, s{sT0}")
    a(f"s_lshl_b32 s{sFLG}, s{sA}, 2")
    a(f"s_add_u32 s{sFLG}, s{sFLG}, s{sB}")
    a(f"s_lshl_b32 s{sFLG}, s{sFLG}, 2")
    a(f"s_add_u32 s{sFLG}, s{sFLG}, s3")
    a(f"s_lshl_b32 s{sT0}, s3, 15")
    a(f"s_lshl_b32 s{sC0}, s{sA}, 17")
    a(f"s_add_u32 s{sC0}, s{sC0}, s{sT0}")
    a(f"s_lshl_b32 s{sC1}, s{sB}, 17")
    a(f"s_add_u32 s{sC1}, s{sC1}, s{sT0}")
    a(f"s_lshl_b32 s{sC2}, s3, 12")
    a(f"s_mul_i32 s{sC3}, s3, 24576")
    a(f"s_add_u32 s{sC3}, s{sC3}, 49152")
    opA = Op('KC', [S0] * 8, 1024, sC0, 2, 6, perm=True)
    opB = Op('KC', [S1] * 4 + [S2] * 4, 1024, sC1, 2, 10)
    opB.rowoff = [(i & 3) * 8 * 1024 for i in range(8)]
    setup_dma(a, opA)

    def bu_dma(st):
        s = st % 3
        return (dma_groups(opA, st, s * 16384, sC2, f"b{st}", rng=range(4)) +
                dma_groups(opB, st, s * 8192, sC3, f"b{st}"))
    emit_groups(a, bu_dma(0))
    srd(a, S3, 'lre')
    srd(a, S4, 'lim')
    srd(a, S5, 'ldt')
    a("v_and_b32 v30, 31, v1")
    a(f"s_lshl_b32 s{sT0}, s{sB}, 7")
    a(f"s_lshl_b32 s{sT1}, s3, 5")
    a(f"s_add_u32 s{sT0}, s{sT0}, s{sT1}")
    a(f"v_add_u32 v30, s{sT0}, v30")
    a("v_lshlrev_b32 v29, 1, v30")
    a.vm(f"buffer_load_ushort v26, v29, s[{S3}:{S3+3}], 0 offen", "lam")
    a.vm(f"buffer_load_ushort v27, v29, s[{S4}:{S4+3}], 0 offen", "lam")
    a.vm(f"buffer_load_ushort v28, v29, s[{S5}:{S5+3}], 0 offen", "lam")
    setup_frag(a, opA, None)
    setup_frag(a, opB, sC3)
    emit_groups(a, bu_dma(1))
    if TT:
        tlb_touch(a)
    a(";WARM a")
    a.stamp(15)
    FRG = [192, 216, 240, 40]

    def freg(j, part):
        if j == 2:
            return [240, 248, 32][part]
        return FRG[j] + part * 8

    def bu_rl(g):
        st, j = divmod(g, 4)
        s = st % 3
        return (read_lines(opA, s * 16384, j, freg(j, 0)) + read_lines(opA, s * 16384 + 8192, j, freg(j, 1)) +
                read_lines(opB, s * 8192, j, freg(j, 2)))

    def bu_M(st, j):
        r = []
        for tl in range(2):
            for qm in range(2):
                for qn in range(2):
                    acc = 64 + tl * 64 + (qm * 2 + qn) * 16
                    A = freg(j, tl) + qm * 4
                    B = freg(j, 2) + qn * 4
                    c = "0" if (st == 0 and j == 0) else f"v[{acc}:{acc+15}]"
                    r.append(f"v_mfma_f32_32x32x16_bf16 v[{acc}:{acc+15}], v[{A}:{A+3}], v[{B}:{B+3}], {c}")
        return r
    a.vwait("lam")
    lam_compute(a, 26, 20, 32)
    a("v_mov_b32 v24, v20")
    a("v_mov_b32 v25, v21")
    for _ in range(5):
        csq(a, 24, 25, 14, 15)
    a.vwait("b0")
    a("s_barrier")
    for l in bu_rl(0) + bu_rl(1):
        a(l)
    pend = bu_dma(2)
    for g in range(32):
        st, j = divmod(g, 4)
        rd = []
        if j == 2 and st + 1 < 8:
            emit_groups(a, pend)
            pend = []
            a.vwait(f"b{st+1}")
            a.stamp(16 + st)
            a("s_waitcnt lgkmcnt(0)")
            a("s_barrier")
            if st + 3 < 8:
                pend = bu_dma(st + 3)
            if st == 5:
                a.vm(f"buffer_load_dwordx2 v[18:19], off, s[{SDBG}:{SDBG+3}], 0 sc1", "non")
        else:
            a(f"s_waitcnt lgkmcnt({6 if g + 1 < 32 else 0})")
        if g + 2 < 32:
            rd = bu_rl(g + 2)
        for k, l in enumerate(bu_M(st, j)):
            a(l)
            if k < len(rd):
                a(rd[k])
            if k in (1, 4, 7) and pend:
                emit_groups(a, [pend.pop(0)])
    a.stamp(1)
    a.vwait0()
    nonce_get(a, 18)
    srdws(a, S3, 'e')
    a("v_lshlrev_b32 v29, 4, v30")
    a(f"s_lshl_b32 s{sT0}, s{sA}, 13")
    a("v_mov_b32 v56, v20")
    a("v_mov_b32 v57, v21")
    csq(a, 56, 57, 14, 15)
    a("v_mov_b32 v58, v20")
    a("v_mov_b32 v59, v56")
    a("v_mov_b32 v60, v21")
    a("v_mov_b32 v61, v57")
    a("s_nop 7")

    def xp(tl, k):
        xr = 64 + tl * 64 + (k >> 3) * 32 + (k & 7) * 2
        return f"v[{xr}:{xr+1}]", f"v[{xr+16}:{xr+17}]"
    LO, HI = "op_sel:[0,0,0] op_sel_hi:[1,0,1]", "op_sel:[0,1,0] op_sel_hi:[1,1,1]"
    NEG = "neg_lo:[0,1,0] neg_hi:[0,1,0]"
    for k in range(16):
        for ph in range(2):
            for tl in range(2):
                XR, XI = xp(tl, k)
                Pr, Pi = f"v[{40+4*tl}:{41+4*tl}]", f"v[{42+4*tl}:{43+4*tl}]"
                t1, t2 = f"v[{48+4*tl}:{49+4*tl}]", f"v[{50+4*tl}:{51+4*tl}]"
                if k == 0:
                    continue
                if k == 1:
                    Pr, Pi = xp(tl, 0)
                if ph == 0:
                    a(f"v_pk_fma_f32 {t1}, {Pi}, v[56:57], {XR} {HI} {NEG}")
                    a(f"v_pk_fma_f32 {t2}, {Pr}, v[56:57], {XI} {HI}")
                else:
                    a(f"v_pk_fma_f32 v[{40+4*tl}:{41+4*tl}], {Pr}, v[56:57], {t1} {LO}")
                    a(f"v_pk_fma_f32 v[{42+4*tl}:{43+4*tl}], {Pi}, v[56:57], {t2} {LO}")
    for tl in range(2):
        b = 40 + 4 * tl
        cmul_add(a, 32 + 4 * tl, 33 + 4 * tl, 20, 21, b, b + 2, b + 1, b + 3, 14 + 2 * tl, 15 + 2 * tl)
    for tl in range(2):
        for c in range(2):
            a(f"v_mov_b32 v{34+4*tl+c}, v{32+4*tl+c}")
    a("s_nop 1")
    for tl in range(2):
        for c in range(2):
            a(f"v_permlane32_swap_b32 v{32+4*tl+c}, v{34+4*tl+c}")
    a("s_nop 1")
    cmul_add(a, 40, 41, 24, 25, 32, 33, 34, 35, 14, 15)
    cmul_add(a, 40, 41, 24, 25, 40, 41, 36, 37, 14, 15)
    cmul_add(a, 40, 41, 24, 25, 40, 41, 38, 39, 14, 15)
    a(f"v_mov_b32 v42, s{sN}")
    a(f"v_mov_b32 v43, s{sN+1}")
    a("s_mov_b32 exec_hi, 0")
    a.vm(f"buffer_store_dwordx4 v[40:43], v29, s[{S3}:{S3+3}], s{sT0} offen sc1")
    a("s_mov_b64 exec, -1")
    a.stamp(2)
    a("s_barrier")
    C, W2 = weight_items(a, True, "A")
    R = Ring(a)

    def premul(t_):
        L2, H2 = "op_sel:[0,0] op_sel_hi:[1,0]", "op_sel:[0,1] op_sel_hi:[1,1]"
        for k in range(16):
            for tl in range(2):
                XR, XI = xp(tl, k)
                t1, t2 = f"v[{48+4*tl}:{49+4*tl}]", f"v[{50+4*tl}:{51+4*tl}]"
                t_(f"v_pk_mul_f32 {t1}, {XI}, v[22:23] {H2}")
                t_(f"v_pk_mul_f32 {t2}, {XR}, v[22:23] {H2}")
                t_(f"v_pk_fma_f32 {XR}, {XR}, v[22:23], {t1} {LO} neg_lo:[0,0,1] neg_hi:[0,0,1]")
                t_(f"v_pk_fma_f32 {XI}, {XI}, v[22:23], {t2} {LO}")
            for tl in range(2):
                xr = 64 + tl * 64 + (k >> 3) * 32 + (k & 7) * 2
                cmul_add(t_, xr + 1, xr + 17, 20, 21, xr, xr + 16, xr + 1, xr + 17, 14 + 2 * tl, 15 + 2 * tl)
    g0 = []
    for i in range(AW):
        g0 += R.groups(W2[i])
    sprinkled(a, premul, g0, 6)
    a("v_mov_b32 v44, v24")
    a("v_mov_b32 v45, v25")
    csq(a, 44, 45, 14, 15)
    csq(a, 44, 45, 14, 15)
    for i in range(AW if AW2 == 0 else 0):
        consume(a, R, W2[i])
    a.stamp(3)
    a("v_mov_b32 v42, 0")
    a("v_mov_b32 v43, 0")
    a(f"s_cmp_eq_u32 s{sA}, 0")
    a("s_cbranch_scc1 L_a_nocarry")
    a(f"s_mov_b32 s{sCNT}, 20000")
    a(f"s_lshl_b32 s{sT1}, s{sA}, 13")
    a(f"s_sub_u32 s{sT1}, s{sT1}, 8192")
    a.label("L_aep")
    for j in range(15):
        a(f"s_min_u32 s{sT0}, s{sT1}, {j*8192}")
        a(f"buffer_load_dwordx4 v[{192+4*j}:{195+4*j}], v29, s[{S3}:{S3+3}], s{sT0} offen sc1")
    a("s_waitcnt vmcnt(0)")
    a(f"v_cmp_ne_u64 vcc, s[{sN}:{sN+1}], v[194:195]")
    for j in range(1, 15):
        a(f"v_cmp_ne_u64 s[48:49], s[{sN}:{sN+1}], v[{194+4*j}:{195+4*j}]")
        a(f"s_or_b64 vcc, vcc, s[48:49]")
    a(f"s_cbranch_vccz L_aepd")
    a(f"s_sub_u32 s{sCNT}, s{sCNT}, 1")
    a(f"s_cmp_lg_u32 s{sCNT}, 0")
    a(f"s_cbranch_scc1 L_aep")
    a.label("L_aepd")
    for j in range(15):
        a(f"s_cmp_le_u32 s{sA}, {j}")
        a("s_cbranch_scc1 L_a_nocarry")
        cmul_add(a, 42, 43, 44, 45, 42, 43, 192 + 4 * j, 193 + 4 * j, 14, 15)
    a.label("L_a_nocarry")
    a.stamp(4)
    for i in range(AW if AW2 == 1 else 0):
        consume(a, R, W2[i])
    cmul_add(a, 46, 47, 24, 25, 42, 43, 32, 33, 14, 15)
    cmul_add(a, 48, 49, 24, 25, 46, 47, 34, 35, 14, 15)
    cmul_add(a, 50, 51, 24, 25, 48, 49, 36, 37, 14, 15)
    a("v_cmp_lt_u32 vcc, 31, v1")
    a("s_nop 1")
    a("v_cndmask_b32 v52, v42, v46, vcc")
    a("v_cndmask_b32 v53, v43, v47, vcc")
    a("v_cndmask_b32 v54, v48, v50, vcc")
    a("v_cndmask_b32 v55, v49, v51, vcc")
    for tl in range(2):
        c = 52 + 2 * tl
        e = 32 + 4 * tl
        a(f"v_mul_f32 v14, v23, v{c+1}")
        a(f"v_mul_f32 v15, v23, v{c}")
        a(f"v_fma_f32 v{e+1}, v22, v{c}, -v14")
        a(f"v_fma_f32 v{e+3}, v22, v{c+1}, v15")
    srdws(a, S4, 'h')
    a("v_lshrrev_b32 v14, 5, v1")
    if HT2:
        a("v_and_b32 v29, 31, v30")
        a("v_lshlrev_b32 v29, 2, v29")
        a("v_lshl_add_u32 v29, v14, 12, v29")
        a("v_lshrrev_b32 v14, 5, v30")
        a("v_lshl_add_u32 v29, v14, 13, v29")
    else:
        a("v_lshlrev_b32 v29, 2, v30")
        a("v_lshl_add_u32 v29, v14, 16, v29")
    if HX:
        assert not HT2
        a("v_and_b32 v15, 3, v1")
        a("v_lshl_add_u32 v14, v14, 5, v15")
        a("v_and_b32 v29, 0x1fc, v30")
        a("v_lshlrev_b32 v29, 2, v29")
        a("v_lshl_add_u32 v29, v14, 11, v29")
    a(f"s_lshl_b32 s{sT0}, s{sA}, 18")
    if SK & 2:
        for tl in range(2):
            a(f"s_lshl_b32 s{sT1}, s{sA}, 1")
            a(f"s_add_u32 s{sT1}, s{sT1}, {tl}")
            sk_off(a, 48 + tl, sT1, sB)
            a(f"s_add_u32 s{48+tl}, s{48+tl}, s{sT0}")

    def scan(t_):
        for k in range(16):
            for ph in range(2):
                for tl in range(2):
                    XR, XI = xp(tl, k)
                    if k == 0:
                        Pr, Pi = f"v[{32+4*tl}:{33+4*tl}]", f"v[{34+4*tl}:{35+4*tl}]"
                    else:
                        Pr, Pi = xp(tl, k - 1)
                    if ph == 0:
                        t_(f"v_pk_fma_f32 {XR}, v[60:61], {Pi}, {XR} {HI} {NEG}")
                        t_(f"v_pk_fma_f32 {XI}, v[60:61], {Pr}, {XI} {HI}")
                    else:
                        t_(f"v_pk_fma_f32 {XR}, v[58:59], {Pr}, {XR} {HI}")
                        t_(f"v_pk_fma_f32 {XI}, v[58:59], {Pi}, {XI} {HI}")
            if HX:
                if k == 15 or (k > 0 and k % 2 == 0):
                    m = 7 if k == 15 else (k - 1) >> 1
                    P, AB, Q = 192, 200, 208 + (m & 1) * 8
                    D1 = "quad_perm:[1,0,3,2] row_mask:0xf bank_mask:0xf"
                    D2 = "quad_perm:[2,3,0,1] row_mask:0xf bank_mask:0xf"
                    t_("s_mov_b32 vcc_lo, 0x55555555")
                    t_("s_mov_b32 vcc_hi, 0x55555555")
                    for tl in range(2):
                        for i in range(4):
                            kq, h = 2 * m + (i >> 1), i & 1
                            xr = 64 + tl * 64 + (kq >> 3) * 32 + (kq & 7) * 2
                            t_(f"v_cvt_pk_bf16_f32 v{P+4*tl+i}, v{xr+h}, -v{xr+16+h}")
                    t_("s_nop 0")
                    for c in range(4):
                        t_(f"v_cndmask_b32_dpp v{AB+2*c}, v{P+2*c+1}, v{P+2*c}, vcc {D1}")
                    t_("s_not_b64 vcc, vcc")
                    for c in range(4):
                        t_(f"v_cndmask_b32_dpp v{AB+2*c+1}, v{P+2*c}, v{P+2*c+1}, vcc {D1}")
                    t_("s_mov_b32 vcc_lo, 0x33333333")
                    t_("s_mov_b32 vcc_hi, 0x33333333")
                    for r in range(2):
                        for tl in range(2):
                            t_(f"v_cndmask_b32_dpp v{Q+4*tl+r}, v{AB+4*tl+2+r}, v{AB+4*tl+r}, vcc {D2}")
                    t_("s_not_b64 vcc, vcc")
                    for tl in range(2):
                        for r in range(2):
                            t_(f"v_cndmask_b32_dpp v{Q+4*tl+2+r}, v{AB+4*tl+r}, v{AB+4*tl+2+r}, vcc {D2}")
                        t_(f"s_add_u32 s{sT1+tl}, s{sT0}, {(tl * 64 + 4 * m) * 2048}")
                    for tl in range(2):
                        t_.vm(f"buffer_store_dwordx4 v[{Q+4*tl}:{Q+4*tl+3}], v29, s[{S4}:{S4+3}], s{sT1+tl} offen sc1", "hst")
                continue
            for kq in ([k - 1] if 0 < k < 15 else ([14, 15] if k == 15 else [])):
                for tl in range(2):
                    xr = 64 + tl * 64 + (kq >> 3) * 32 + (kq & 7) * 2
                    t_(f"s_add_u32 s{sT1+tl}, s{sT0}, {tl * 131072 + 2 * kq * (128 if HT2 else 2048)}")
                    for h in range(2):
                        pk = 40 + ((kq * 4 + tl * 2 + h) & 7)
                        t_(f"v_cvt_pk_bf16_f32 v{pk}, v{xr+h}, -v{xr+16+h}")
                        so = sT1 + tl
                        if SK & 2 and (2 * kq + h) & 7 == 3:
                            so = sT3
                            t_(f"s_add_u32 s{sT3}, s{48+tl}, {tl * 131072 + 2 * kq * 128}")
                        t_.vm(f"buffer_store_dword v{pk}, v29, s[{S4}:{S4+3}], s{so} offen offset:{h * (128 if HT2 else 2048)} sc1", "hst")
    rest = W2[AW:] + C
    g0 = []
    nis = min(len(R.free), ASC)
    for it in rest[:nis]:
        g0 += R.groups(it)
    sprinkled(a, scan, g0, 5)
    a.stamp(13)
    a.vwait("hst")
    wave_flag(a, FL_H)
    a.stamp(5)
    tail(a, R, (W2[:AW] if AW2 == 2 else []) + rest[:nis], rest[nis:], "A")
    a.label("L_end")
    a("s_endpgm")


WARMK = int(os.environ.get('WARMK', '0'))
WSEG = int(os.environ.get('WSEG', '4'))


def warm_pp(lines):
    ends = ("L_lpath:", "L_apath:", "L_end:")
    out = []
    i = 0
    while i < len(lines):
        l = lines[i]
        if not l.strip().startswith(";WARM"):
            out.append(l)
            i += 1
            continue
        nm = l.split()[1]
        j = i + 1
        while lines[j] not in ends:
            j += 1
        body = lines[i + 1:j]
        if not WARMK:
            out += body
            i = j
            continue
        pos = []
        cnt = WARMK // 2
        for k, b in enumerate(body):
            if b.endswith(":"):
                continue
            cnt += b.count("\n") + 1
            if cnt >= WARMK:
                pos.append(k)
                cnt = 0
        n = len(pos)
        seg = [n * w // WSEG for w in range(WSEG + 1)]
        out.append("    s_mov_b64 exec, 0")
        if WSEG == 1:
            out.append("    s_cmp_lg_u32 s3, 3")
            out.append(f"    s_cbranch_scc1 W_{nm}_ret")
        for w in range(1, WSEG):
            out.append(f"    s_cmp_eq_u32 s3, {w}")
            out.append(f"    s_cbranch_scc1 W_{nm}_{seg[w]}")
        out.append(f"    s_branch W_{nm}_0")
        out.append(f"W_{nm}_ret:")
        out.append("    s_mov_b64 exec, -1")
        ps = {k: q for q, k in enumerate(pos)}
        for k, b in enumerate(body):
            if k in ps:
                q = ps[k]
                out.append(f"W_{nm}_{q}:")
                out.append(f"    s_cbranch_execz W_{nm}_{'ret' if q + 1 in seg else q + 1}")
            out.append(b)
        i = j
    return out


def main():
    ref = open(f"cdna_kernels/{NAME}.s.ref").read().split("\n")
    head = [l for l in ref if l.startswith(";") and "@launch" not in l and "Override" not in l and "grid=ceil" not in l]
    out = head + [
        "; @launch grid=(256,1,1) block=(256,1,1) lds=163840",
        '.amdgcn_target "amdgcn-amd-amdhsa--gfx950"',
        ".text",
    ]
    a = Asm()
    kernel(a)
    out += warm_pp(a.lines)
    out.append('.section .rodata,"a"')
    out.append(f""".p2align 6
.amdhsa_kernel {NAME}_kernel
  .amdhsa_next_free_vgpr 512
  .amdhsa_next_free_sgpr 102
  .amdhsa_accum_offset 256
  .amdhsa_group_segment_fixed_size 0
  .amdhsa_kernarg_size 144
  .amdhsa_user_sgpr_count 2
  .amdhsa_user_sgpr_kernarg_segment_ptr 1
  .amdhsa_system_sgpr_workgroup_id_x 1
.end_amdhsa_kernel
""")
    path = sys.argv[1] if len(sys.argv) > 1 else f"f8.s"
    open(path, "w").write("\n".join(out) + "\n")


main()
```
